```python
import torch

def _softmax(x, axis=-1):
    return torch.softmax(x, dim=axis)
def _gelu(x):
    return torch.nn.functional.gelu(x, approximate="tanh")
def _silu(x):
    return torch.nn.functional.silu(x)
def _sigmoid(x):
    return torch.sigmoid(x)
def _layernorm(x, axis=-1, eps=1e-5):
    m = x.mean(dim=axis, keepdim=True)
    v = x.var(dim=axis, keepdim=True, unbiased=False)
    return (x - m) / torch.sqrt(v + eps)
def _scatter_add(tgt, idx, src, axis=0):
    return tgt.clone().index_add_(axis, idx, src)
def _segment_sum(src, seg, n):
    out = torch.zeros((n,) + src.shape[1:], dtype=src.dtype)
    return out.index_add_(0, seg, src)
def _pad(x, pw):
    flat = tuple(v for pair in reversed(pw) for v in pair)
    return torch.nn.functional.pad(x, flat)

kernel_name = 'concat_heads__mha_block__softmax_full_mha__prompt'

def setup_inputs():

    _w = (lambda a: (lambda t: t.to(torch.bfloat16) if t.is_floating_point() else t)(torch.as_tensor(a)))
    def _A_setup():
        B, S, D, H = 1, 2048, 512, 32
        return {
            "x": _w((lambda *s: torch.randn(*s, dtype=torch.bfloat16) * 0.2)(B, S, D)),
            "wqkv": _w((lambda *s: torch.randn(*s, dtype=torch.bfloat16) * 0.2)(D, 3 * D)),
            "wo": _w((lambda *s: torch.randn(*s, dtype=torch.bfloat16) * 0.05)(D, D)),
        }
    _A_in = _A_setup()

    def _B_setup():
        B, S, D = 1, 2048, 512
        return {
            "x": _w((lambda *s: torch.randn(*s, dtype=torch.bfloat16) * 0.2)(B, S, D)),
            "wqkv": _w((lambda *s: torch.randn(*s, dtype=torch.bfloat16) * 0.2)(D, 3 * D)),
            "wo": _w((lambda *s: torch.randn(*s, dtype=torch.bfloat16) * 0.05)(D, D)),
        }
    _B_in = _B_setup()

    return {
        "A_x": _A_in["x"],
        "A_wqkv": _A_in["wqkv"],
        "A_wo": _A_in["wo"],
        "B_x": _B_in["x"],
        "B_wqkv": _B_in["wqkv"],
        "B_wo": _B_in["wo"],
    }

def reference(A_x, A_wqkv, A_wo, B_x, B_wqkv, B_wo):
    def _A_ref(x, wqkv, wo):
        B, S, D = x.shape
        H = 32
        Dh = D // H
        qkv = (lambda x, *d: x.permute(*d))((x @ wqkv).reshape(B, S, 3, H, Dh), 2, 0, 3, 1, 4)
        q, k, v = qkv[0], qkv[1], qkv[2]
        scores = torch.einsum("bhqd,bhkd->bhqk", q, k) * (Dh ** -0.5)
        p = _softmax(scores, axis=-1)
        o = torch.einsum("bhqk,bhkd->bhqd", p, v)
        return (lambda x, *d: x.permute(*d))(o, 0, 2, 1, 3).reshape(B, S, D) @ wo

    def _B_ref(x, wqkv, wo):
        B, S, D = x.shape
        H = 32; Dh = D // H
        qkv = (lambda x, *d: x.permute(*d))((x @ wqkv).reshape(B, S, 3, H, Dh), 2, 0, 3, 1, 4)
        q, k, v = qkv[0], qkv[1], qkv[2]
        scale = Dh ** -0.5
        scores = torch.einsum("bhqd,bhkd->bhqk", q, k) * scale
        p = _softmax(scores, axis=-1)
        o = torch.einsum("bhqk,bhkd->bhqd", p, v)
        return (lambda x, *d: x.permute(*d))(o, 0, 2, 1, 3).reshape(B, S, D) @ wo

    a = _A_ref(A_x, A_wqkv, A_wo)
    b = _B_ref(B_x, B_wqkv, B_wo)
    return torch.concatenate([a, b], axis=-1)
```

```python
import sys, math, struct

NAME = "concat_heads__mha_block__softmax_full_mha__prompt"
QF, KF, VF, OF = 0, 4 << 20, 8 << 20, 12 << 20
WS_USED = 16 << 20
CSCALE = 0.25 * 1.4426950408889634

def f2u(x): return struct.unpack("<I", struct.pack("<f", x))[0]

class Asm:
    def __init__(self): self.l = []
    def __call__(self, s):
        for line in s.strip("\n").split("\n"):
            line = line.strip()
            if not line: continue
            self.l.append(line if line.endswith(":") or line.startswith(".") else "  " + line)
    def text(self): return "\n".join(self.l) + "\n"

def vr(b, n=4): return f"v[{b}:{b+n-1}]"
def sr(b, n=2): return f"s[{b}:{b+n-1}]"

def header(name):
    return f""".globl {name}
.p2align 12
.type {name},@function
{name}:
"""
def descriptor(name, nvgpr, nsgpr=96):
    acc = (nvgpr + 3) // 4 * 4
    return f""".section .rodata,"a"
.p2align 6
.amdhsa_kernel {name}
  .amdhsa_next_free_vgpr {nvgpr}
  .amdhsa_next_free_sgpr {nsgpr}
  .amdhsa_accum_offset {acc}
  .amdhsa_group_segment_fixed_size 0
  .amdhsa_kernarg_size 72
  .amdhsa_user_sgpr_count 2
  .amdhsa_user_sgpr_kernarg_segment_ptr 1
  .amdhsa_system_sgpr_workgroup_id_x 1
.end_amdhsa_kernel
.text
"""

def srd(a, d, lo, hi, nbytes):
    a(f"""
    s_mov_b32 s{d}, s{lo}
    s_mov_b32 s{d+1}, s{hi}
    s_mov_b32 s{d+2}, {nbytes}
    s_mov_b32 s{d+3}, 0x20000
    """)

def k_qkv(opt):
    name = "mha_qkv_kernel"
    a = Asm()
    SLOT = 40960
    a(f"""
    s_cmp_ge_u32 s2, 256
    s_cbranch_scc1 Lq_done
    s_load_dwordx4 s[4:7], s[0:1], 0
    s_load_dwordx4 s[8:11], s[0:1], 24
    s_load_dwordx2 s[12:13], s[0:1], 64
    v_lshrrev_b32 v1, 6, v0
    v_and_b32 v0, 63, v0
    s_and_b32 s14, s2, 7
    v_readfirstlane_b32 s20, v1
    s_lshr_b32 s15, s2, 3
    """)
    if opt.get("qkv_map", 0) == 0:
        a("""
        s_and_b32 s16, s14, 1
        s_lshl_b32 s16, s16, 3
        s_and_b32 s17, s15, 7
        s_add_u32 s21, s16, s17
        s_bfe_u32 s16, s14, 0x10001
        s_lshl_b32 s16, s16, 2
        s_lshr_b32 s17, s15, 3
        s_add_u32 s22, s16, s17
        """)
    else:
        a("""
        s_lshr_b32 s21, s15, 1
        s_and_b32 s16, s14, 3
        s_lshl_b32 s16, s16, 1
        s_and_b32 s17, s15, 1
        s_add_u32 s22, s16, s17
        """)
    a("""
    s_lshr_b32 s23, s14, 2
    s_cmp_eq_u32 s23, 0
    s_waitcnt lgkmcnt(0)
    s_cselect_b32 s4, s4, s8
    s_cselect_b32 s5, s5, s9
    s_cselect_b32 s6, s6, s10
    s_cselect_b32 s7, s7, s11
    s_cmp_ge_u32 s20, 4
    s_cbranch_scc1 Lq_loader
    """)
    ACC = 16
    XB = [112, 120]
    WB = [128, 140]
    VXB, VWB = 2, 6
    VX, VW = 8, 12
    def acc(seg, i): return ACC + (seg * 2 + i) * 16
    a(f"""
    s_lshr_b32 s24, s20, 1
    s_and_b32 s25, s20, 1
    v_and_b32 v13, 31, v0
    v_lshrrev_b32 v14, 5, v0
    v_bfe_u32 v15, v0, 1, 3
    s_lshl_b32 s26, s24, 13
    v_lshlrev_b32 v13, 7, v13
    v_add_u32 v13, s26, v13
    """)
    for ks in range(4):
        a(f"""
        v_add_u32 v7, {2*ks}, v14
        v_xor_b32 v7, v7, v15
        v_lshl_add_u32 v{VXB+ks}, v7, 4, v13
        """)
    a(f"""
    v_bfe_u32 v7, v0, 2, 2
    v_lshl_add_u32 v7, v14, 3, v7
    v_mul_u32_u24 v7, 384, v7
    v_bfe_u32 v13, v0, 3, 1
    v_xor_b32 v13, s25, v13
    v_lshl_add_u32 v7, v13, 6, v7
    v_bfe_u32 v13, v0, 4, 1
    v_lshl_add_u32 v7, v13, 5, v7
    v_and_b32 v13, 3, v0
    v_lshl_add_u32 v7, v13, 3, v7
    v_add_u32 v{VWB}, 16384, v7
    """)
    for r in range(ACC, ACC + 96): a(f"v_mov_b32 v{r}, 0")
    for ks in range(4): a(f"v_mov_b32 v{VX+ks}, v{VXB+ks}")
    a(f"v_mov_b32 v{VW}, v{VWB}")
    a(f"""
    s_lshl_b32 s27, s23, 5
    s_lshl_b32 s28, s22, 2
    s_add_u32 s27, s27, s28
    s_lshl_b32 s28, s25, 1
    s_add_u32 s27, s27, s28
    s_lshl_b32 s27, s27, 16
    s_lshl_b32 s28, s21, 2
    s_lshl_b32 s29, s24, 1
    s_add_u32 s28, s28, s29
    s_lshl_b32 s28, s28, 10
    s_add_u32 s28, s27, s28
    s_add_u32 s29, s28, {KF}
    s_add_u32 s30, s28, {VF}
    v_lshlrev_b32 v152, 4, v0
    v_bfe_u32 v7, v0, 2, 1
    v_bfe_u32 v13, v0, 3, 1
    v_and_b32 v153, 0x33, v0
    v_lshl_or_b32 v153, v7, 3, v153
    v_lshl_or_b32 v153, v13, 2, v153
    v_lshlrev_b32 v153, 4, v153
    v_and_b32 v154, 15, v0
    v_lshl_or_b32 v154, v14, 4, v154
    v_lshlrev_b32 v154, 4, v154
    v_bfe_u32 v7, v0, 4, 1
    v_lshl_or_b32 v154, v7, 16, v154
    v_add_u32 v155, 0x10000, v152
    v_add_u32 v156, 0x10000, v153
    """)
    srd(a, 16, 12, 13, OF)
    def reads(buf, ks):
        L = [f"ds_read_b128 {vr(XB[buf])}, v{VX+ks}"]
        for seg in range(3):
            for rd in range(2):
                L.append(f"ds_read_b64_tr_b16 {vr(WB[buf]+seg*4+rd*2, 2)}, v{VW} offset:{ks*6144+rd*1536+seg*128}")
        L.insert(3, f"ds_read_b128 {vr(XB[buf]+4)}, v{VX+ks} offset:4096")
        return L
    def mfmas(buf):
        L = []
        for i in range(2):
            for seg in range(3):
                w = vr(WB[buf] + seg * 4); x = vr(XB[buf] + i * 4); d = vr(acc(seg, i), 16)
                L.append(f"v_mfma_f32_32x32x16_bf16 {d}, {w}, {x}, {d}" if seg < 2 else f"v_mfma_f32_32x32x16_bf16 {d}, {x}, {w}, {d}")
        return L
    a("s_mov_b32 s31, 0\ns_mov_b32 s32, 0\ns_barrier")
    for r in reads(0, 0): a(r)
    a("Lq_loop:")
    for ks in range(4):
        cur, nxt = ks % 2, (ks + 1) % 2
        M = mfmas(cur)
        a("s_waitcnt lgkmcnt(0)")
        if ks < 3:
            R = reads(nxt, ks + 1)
            seq = [M[0]] + R[0:3] + [M[1]] + R[3:6] + [M[2]] + R[6:8] + M[3:]
            for s in seq: a(s)
        else:
            R = reads(nxt, 0)
            a(M[0]); a(M[1])
            a(f"""
            s_cmp_eq_u32 s31, 7
            s_cbranch_scc1 Lq_last
            s_add_u32 s32, s32, {SLOT}
            s_cmp_eq_u32 s32, {4*SLOT}
            s_cselect_b32 s32, 0, s32
            s_add_u32 s31, s31, 1
            """)
            a(f"v_add_u32 v{VX}, s32, v{VXB}\nv_add_u32 v{VW}, s32, v{VWB}")
            a("s_barrier")
            seq = R[0:3] + [f"v_add_u32 v{VX+1}, s32, v{VXB+1}", M[2]] + R[3:6] + [f"v_add_u32 v{VX+2}, s32, v{VXB+2}", M[3]] + R[6:8] + [f"v_add_u32 v{VX+3}, s32, v{VXB+3}"] + M[4:]
            for s in seq: a(s)
            a("s_branch Lq_loop")
            a("Lq_last:")
            for m in M[2:]: a(m)
    a(f"s_mov_b32 s33, {hex(f2u(CSCALE))}")
    a("s_nop 7")
    order = [(0, 0), (1, 0), (2, 0), (0, 1), (1, 1), (2, 1)]
    a("s_nop 7")
    for (seg, i) in order:
        d = acc(seg, i)
        if seg == 0:
            for r in range(16): a(f"v_mul_f32 v{d+r}, s33, v{d+r}")
        for r in range(8): a(f"v_cvt_pk_bf16_f32 v{d+r}, v{d+2*r}, v{d+2*r+1}")
        if seg == 0:
            a(f"buffer_store_dwordx4 {vr(d)}, v152, s[16:19], s28 offen offset:{i*1024}")
            a(f"buffer_store_dwordx4 {vr(d+4)}, v155, s[16:19], s28 offen offset:{i*1024}")
        elif seg == 1:
            a(f"buffer_store_dwordx4 {vr(d)}, v153, s[16:19], s29 offen offset:{i*1024}")
            a(f"buffer_store_dwordx4 {vr(d+4)}, v156, s[16:19], s29 offen offset:{i*1024}")
        else:
            a(f"buffer_store_dwordx4 {vr(d)}, v154, s[16:19], s30 offen offset:{i*1024}")
            a(f"buffer_store_dwordx4 {vr(d+4)}, v154, s[16:19], s30 offen offset:{i*1024+512}")
    a("s_endpgm")
    a("Lq_loader:")
    a(f"""
    s_sub_u32 s24, s20, 4
    s_lshl_b32 s25, s21, 17
    s_add_u32 s4, s4, s25
    s_addc_u32 s5, s5, 0
    s_lshl_b32 s25, s22, 7
    s_add_u32 s6, s6, s25
    s_addc_u32 s7, s7, 0
    s_sub_u32 s26, {512*3072}, s25
    """)
    srd(a, 8, 4, 5, 131072)
    a(f"""
    s_mov_b32 s12, s6
    s_mov_b32 s13, s7
    s_mov_b32 s14, s26
    s_mov_b32 s15, 0x20000
    v_lshrrev_b32 v1, 3, v0
    v_lshlrev_b32 v1, 10, v1
    s_lshl_b32 s25, s24, 15
    v_add_u32 v1, s25, v1
    v_and_b32 v2, 7, v0
    v_lshrrev_b32 v3, 4, v0
    v_xor_b32 v4, v2, v3
    v_lshl_add_u32 v10, v4, 4, v1
    v_xor_b32 v4, 4, v4
    v_lshl_add_u32 v11, v4, 4, v1
    s_lshl_b32 s25, s24, 4
    s_movk_i32 s27, 2731
    """)
    for t3 in range(3):
        a(f"""
        v_add_u32 v1, {64*t3}, v0
        v_mul_lo_u32 v2, v1, s27
        v_lshrrev_b32 v2, 16, v2
        v_mul_u32_u24 v3, 24, v2
        v_sub_u32 v3, v1, v3
        v_lshrrev_b32 v4, 2, v3
        v_bfe_u32 v5, v2, 1, 1
        v_xor_b32 v4, v4, v5
        v_add_u32 v2, s25, v2
        v_mul_u32_u24 v2, 3072, v2
        v_lshrrev_b32 v5, 1, v4
        v_lshl_add_u32 v2, v5, 10, v2
        v_and_b32 v5, 1, v4
        v_lshl_add_u32 v2, v5, 6, v2
        v_and_b32 v5, 3, v3
        v_lshl_add_u32 v{12+t3}, v5, 4, v2
        """)
    a(f"""
    s_mov_b32 s30, 0
    s_mov_b32 s31, 0
    s_mov_b32 s32, 0
    s_lshl_b32 s33, s24, 12
    s_mul_i32 s34, s24, 6144
    s_add_u32 s34, s34, 16384
    Lq_lloop:
    s_cmp_lt_u32 s30, 4
    s_cbranch_scc1 Lq_issue
    s_cmp_lg_u32 s30, 4
    s_cbranch_scc1 Lq_l1
    s_waitcnt vmcnt(30)
    s_barrier
    Lq_l1:
    s_waitcnt vmcnt(20)
    s_barrier
    Lq_issue:
    """)
    for i in range(4):
        a(f"""
        s_add_u32 m0, s33, {i*1024}
        s_add_u32 s35, s31, {i*8192}
        buffer_load_dwordx4 v{10+(i&1)}, s[8:11], s35 offen lds
        """)
    for g in range(2):
        for t3 in range(3):
            a(f"""
            s_add_u32 m0, s34, {g*3072+t3*1024}
            s_add_u32 s35, s32, {g*8*3072}
            buffer_load_dwordx4 v{12+t3}, s[12:15], s35 offen lds
            """)
    a(f"""
    s_add_u32 s30, s30, 1
    s_add_u32 s31, s31, 128
    s_add_u32 s32, s32, {64*3072}
    s_mov_b32 s35, {SLOT}
    s_cmp_eq_u32 s30, 4
    s_cselect_b32 s35, {-3*SLOT & 0xffffffff}, s35
    s_add_u32 s33, s33, s35
    s_add_u32 s34, s34, s35
    s_cmp_lt_u32 s30, 8
    s_cbranch_scc1 Lq_lloop
    s_waitcnt vmcnt(20)
    s_barrier
    s_waitcnt vmcnt(10)
    s_barrier
    s_waitcnt vmcnt(0)
    s_barrier
    Lq_done:
    s_endpgm
    """)
    return name, a.text(), 160, "grid=(256,1,1) block=(512,1,1) lds=163840"

def k_attn(opt):
    name = "mha_attn_kernel"
    a = Asm()
    VBASE, VSTR = 65536, 1040
    Q = [8, 12]; K = [16, 20]; V = [[24, 28], [32, 36]]; S = [40, 56]; O = [72, 88]
    IDX, VK, VV0, VV1, VLANE = 7, 2, 3, 4, 5
    NEG = 104
    UNR = opt.get("unr", 8)
    a(f"""
    s_cmp_ge_u32 s2, 256
    s_cbranch_scc1 La_done
    s_load_dwordx2 s[4:5], s[0:1], 64
    v_lshrrev_b32 v1, 6, v0
    v_and_b32 v0, 63, v0
    s_and_b32 s21, s2, 63
    v_readfirstlane_b32 s20, v1
    s_lshr_b32 s22, s2, 6
    v_lshlrev_b32 v{VLANE}, 4, v0
    """)
    if opt.get("qkv_map", 0) == 1:
        a("""
        s_and_b32 s23, s2, 7
        s_lshl_b32 s23, s23, 3
        s_bfe_u32 s21, s2, 0x30003
        s_add_u32 s21, s21, s23
        """)
    a(f"""
    s_lshl_b32 s23, s21, 16
    s_and_b32 s24, s20, 1
    s_lshr_b32 s25, s20, 1
    s_lshl_b32 s26, s24, 22
    s_add_u32 s26, s26, s23
    s_add_u32 s26, s26, {KF}
    s_lshl_b32 s27, s22, 4
    s_lshl_b32 s28, s20, 1
    s_add_u32 s27, s27, s28
    s_lshl_b32 s28, s27, 10
    s_add_u32 s28, s28, s23
    s_lshl_b32 s29, s25, 10
    s_movk_i32 s30, 1024
    s_cmp_eq_u32 s24, 0
    s_cselect_b32 s30, s30, {VSTR}
    s_cselect_b32 s31, 0, {VBASE}
    s_mul_i32 s32, s25, s30
    s_add_u32 s31, s31, s32
    s_lshl_b32 s30, s30, 2
    s_waitcnt lgkmcnt(0)
    s_add_u32 s8, s4, s26
    s_addc_u32 s9, s5, 0
    s_mov_b32 s10, 65536
    s_mov_b32 s11, 0x20000
    """)
    srd(a, 12, 4, 5, WS_USED)
    a(f"""
    buffer_load_dwordx4 {vr(Q[0])}, v{VLANE}, s[12:15], s28 offen
    buffer_load_dwordx4 {vr(Q[1])}, v{VLANE}, s[12:15], s28 offen offset:1024
    """)
    for i in range(16):
        a(f"""
        s_mov_b32 m0, s31
        s_add_u32 s31, s31, s30
        buffer_load_dwordx4 v{VLANE}, s[8:11], s29 offen lds
        s_add_u32 s29, s29, 4096
        """)
    a(f"""
    v_mov_b32 v{S[0]}, 0x3f803f80
    v_mov_b32 v{S[0]+1}, 0x3f803f80
    v_mov_b32 v{S[0]+2}, 0x3f803f80
    v_mov_b32 v{S[0]+3}, 0x3f803f80
    v_mul_u32_u24 v1, {VSTR}, v0
    v_add_u32 v1, {VBASE+1024}, v1
    s_cmp_lg_u32 s20, 0
    s_cbranch_scc1 La_noones
    ds_write_b128 v1, {vr(S[0])}
    La_noones:
    v_mov_b32 v{VK}, v{VLANE}
    v_and_b32 v1, 15, v0
    v_lshrrev_b32 v6, 5, v0
    v_lshl_or_b32 v1, v6, 4, v1
    v_lshlrev_b32 v1, 4, v1
    v_add_u32 v{VV0}, {VBASE}, v1
    v_add_u32 v{VV1}, {VBASE+512}, v1
    v_mov_b32 v1, {VBASE+1024}
    v_and_b32 v6, 16, v0
    v_cmp_ne_u32 vcc, 0, v6
    v_mov_b32 v{IDX}, 0xdddddddd
    v_mov_b32 v{S[1]+8}, 0
    v_cndmask_b32 v{VV0}, v{VV0}, v1, vcc
    v_cndmask_b32 v{VV1}, v{VV1}, v1, vcc
    """)
    for r in range(S[1] + 9, S[1] + 16): a(f"v_mov_b32 v{r}, 0")
    for r in range(4): a(f"v_mov_b32 v{V[1][1]+r}, 0")
    for r in range(32): a(f"v_mov_b32 v{O[0]+r}, 0")
    a(f"""
    s_lshr_b32 s33, s21, 5
    s_lshl_b32 s33, s33, 6
    s_add_u32 s33, s33, s27
    s_lshl_b32 s33, s33, 5
    s_and_b32 s34, s21, 31
    s_add_u32 s33, s33, s34
    s_lshl_b32 s33, s33, 10
    s_add_u32 s33, s33, {OF}
    s_add_u32 s34, s33, 32768
    s_mov_b32 s35, 0
    s_waitcnt vmcnt({16 - (UNR + 3) // 4}) lgkmcnt(0)
    s_barrier
    ds_read_b128 {vr(K[0])}, v{VK}
    ds_read_b128 {vr(V[0][0])}, v{VV0}
    ds_read_b128 {vr(V[0][1])}, v{VV1}
    s_waitcnt lgkmcnt(0)
    v_mfma_f32_32x32x16_bf16 {vr(S[0],16)}, {vr(K[0])}, {vr(Q[0])}, 0
    s_nop 7
    s_nop 3
    .p2align 3
    La_loop:
    """)
    t = 2
    N = UNR * t
    for u in range(N):
        kt, q = divmod(u, t)
        pkt, pq = divmod((u - 1) % N, t)
        nkt, nq = divmod((u + 1) % N, t)
        s = S[u % 2]; sp = S[(u - 1) % 2]; sn = S[(u + 1) % 2]
        ex = [f"v_exp_f32 v{s+i}, v{s+i}" for i in range(16)]
        pv2 = f"v_smfmac_f32_32x32x32_bf16 {vr(O[pq],16)}, {vr(V[pkt%2][1])}, {vr(sp+8,8)}, v{IDX}"
        pv1 = f"v_smfmac_f32_32x32x32_bf16 {vr(O[q],16)}, {vr(V[kt%2][0])}, {vr(s,8)}, v{IDX}"
        qk = f"v_mfma_f32_32x32x16_bf16 {vr(sn,16)}, {vr(K[nkt%2])}, {vr(Q[nq])}, 0"
        seq = ex[:2] + [pv2]
        if q == 0:
            nb = (kt + 1) % 2
            if kt == UNR - 1:
                seq += ["s_cmp_lg_u32 s35, 0", "s_cbranch_scc1 La_skipw", "s_waitcnt vmcnt(0)", "s_barrier", "La_skipw:"]
            seq += [f"ds_read_b128 {vr(K[nb])}, v{VK} offset:{(kt+1)*1024}",
                    f"ds_read_b128 {vr(V[nb][0])}, v{VV0} offset:{(kt+1)*VSTR}",
                    f"ds_read_b128 {vr(V[nb][1])}, v{VV1} offset:{(kt+1)*VSTR}"]
        seq += ex[2:5]
        if q == 1: seq += ["s_waitcnt lgkmcnt(0)"]
        seq += [qk] + ex[5:10] + [pv1]
        if kt == UNR - 1 and q == 1:
            seq += [f"v_add_u32 v{VK}, {UNR*1024}, v{VK}", f"v_add_u32 v{VV0}, {UNR*VSTR}, v{VV0}", f"v_add_u32 v{VV1}, {UNR*VSTR}, v{VV1}",
                    f"s_add_u32 s35, s35, 1", f"s_cmp_lt_u32 s35, {64//UNR}"]
        seq += ex[10:]
        for x in seq: a(x)
    a("s_cbranch_scc1 La_loop")
    pkt, pq = divmod(N - 1, t)
    a(f"""
    s_nop 1
    v_smfmac_f32_32x32x32_bf16 {vr(O[pq],16)}, {vr(V[pkt%2][1])}, {vr(S[(N-1)%2]+8,8)}, v{IDX}
    s_mov_b32 s36, {hex(f2u(2.0**-32))}
    s_mov_b32 s37, {hex(f2u(2.0**32))}
    s_nop 7
    s_nop 3
    """)
    z = S[0]
    a(f"v_mul_f32 v{z}, 0, v{O[0]}")
    for r in list(range(1, 8)) + list(range(16, 24)): a(f"v_fmac_f32 v{z}, 0, v{O[0]+r}")
    a(f"""
    v_min_f32 v{z+1}, v{O[0]+8}, v{O[1]+8}
    v_max_f32 v{z+2}, v{O[0]+8}, v{O[1]+8}
    v_add_f32 v{z+3}, v{O[0]+8}, v{O[1]+8}
    v_fmac_f32 v{z}, 0, v{z+3}
    v_cmp_nge_f32 s[38:39], v{z+1}, s36
    v_cmp_nle_f32 s[40:41], v{z+2}, s37
    v_cmp_neq_f32 vcc, 0, v{z}
    s_nop 1
    s_or_b64 s[38:39], s[38:39], s[40:41]
    s_or_b64 vcc, vcc, s[38:39]
    s_cbranch_vccnz La_slow
    La_fin:
    """)
    for q in range(2):
        o = O[q]
        a(f"v_rcp_f32 v{z}, v{o+8}\ns_nop 0")
        for r in range(8): a(f"v_mul_f32 v{o+r}, v{z}, v{o+r}")
        for r in range(4): a(f"v_cvt_pk_bf16_f32 v{o+r}, v{o+2*r}, v{o+2*r+1}")
        a(f"buffer_store_dwordx4 {vr(o)}, v{VLANE}, s[12:15], s{33+q} offen")
    a("La_done:\ns_endpgm")
    a("La_slow:")
    a(f"""
    v_subrev_u32 v{VK}, {64*1024}, v{VK}
    v_subrev_u32 v{VV0}, {64*VSTR}, v{VV0}
    v_subrev_u32 v{VV1}, {64*VSTR}, v{VV1}
    """)
    for q in range(2):
        s = S[0]
        a(f"""
        v_mov_b32 v1, 0xff800000
        v_mov_b32 v6, v{VK}
        s_mov_b32 s35, 0
        La_max{q}:
        ds_read_b128 {vr(K[0])}, v6
        v_add_u32 v6, 1024, v6
        s_waitcnt lgkmcnt(0)
        v_mfma_f32_32x32x16_bf16 {vr(s,16)}, {vr(K[0])}, {vr(Q[q])}, 0
        s_nop 7
        s_nop 7
        """)
        for r in range(8): a(f"v_max3_f32 v1, v1, v{s+2*r}, v{s+2*r+1}")
        a(f"""
        s_add_u32 s35, s35, 1
        s_cmp_lt_u32 s35, 64
        s_cbranch_scc1 La_max{q}
        v_mov_b32 v6, v1
        s_nop 1
        v_permlane32_swap_b32 v1, v6
        s_nop 1
        v_max_f32 v1, v1, v6
        """)
        for r in range(16): a(f"v_sub_f32 v{NEG+r}, 0, v1")
        for r in range(16): a(f"v_mov_b32 v{O[q]+r}, 0")
        a(f"""
        v_mov_b32 v6, v{VK}
        v_mov_b32 v120, v{VV0}
        v_mov_b32 v121, v{VV1}
        s_mov_b32 s35, 0
        La_acc{q}:
        ds_read_b128 {vr(K[0])}, v6
        ds_read_b128 {vr(V[0][0])}, v120
        ds_read_b128 {vr(V[0][1])}, v121
        v_add_u32 v6, 1024, v6
        v_add_u32 v120, {VSTR}, v120
        v_add_u32 v121, {VSTR}, v121
        s_waitcnt lgkmcnt(0)
        v_mfma_f32_32x32x16_bf16 {vr(s,16)}, {vr(K[0])}, {vr(Q[q])}, {vr(NEG,16)}
        s_nop 7
        s_nop 7
        """)
        for r in range(16): a(f"v_exp_f32 v{s+r}, v{s+r}")
        a(f"""
        s_nop 2
        v_smfmac_f32_32x32x32_bf16 {vr(O[q],16)}, {vr(V[0][0])}, {vr(s,8)}, v{IDX}
        v_smfmac_f32_32x32x32_bf16 {vr(O[q],16)}, {vr(V[0][1])}, {vr(s+8,8)}, v{IDX}
        s_add_u32 s35, s35, 1
        s_cmp_lt_u32 s35, 64
        s_cbranch_scc1 La_acc{q}
        s_nop 7
        s_nop 7
        """)
    a("s_branch La_fin")
    return name, a.text(), 128, "grid=(256,1,1) block=(512,1,1) lds=133376"

def k_oproj(opt):
    name = "mha_oproj_kernel"
    a = Asm()
    OB = 32
    ACC = [160, 176]
    WB = [8, 16]
    a(f"""
    s_cmp_ge_u32 s2, 256
    s_cbranch_scc1 Lo_done
    s_load_dwordx2 s[4:5], s[0:1], 16
    s_load_dwordx4 s[8:11], s[0:1], 40
    s_load_dwordx2 s[6:7], s[0:1], 64
    v_lshrrev_b32 v1, 6, v0
    v_and_b32 v0, 63, v0
    s_and_b32 s14, s2, 7
    v_readfirstlane_b32 s20, v1
    s_lshr_b32 s15, s2, 3
    s_lshl_b32 s21, s14, 2
    s_lshr_b32 s22, s15, 3
    s_add_u32 s21, s21, s22
    s_and_b32 s22, s15, 7
    s_lshr_b32 s23, s21, 4
    s_lshl_b32 s24, s21, 2
    s_add_u32 s24, s24, s20
    s_lshl_b32 s25, s24, 15
    s_add_u32 s25, s25, {OF}
    v_lshlrev_b32 v2, 4, v0
    v_lshrrev_b32 v3, 3, v0
    v_lshlrev_b32 v3, 10, v3
    v_bfe_u32 v4, v0, 4, 1
    v_lshlrev_b32 v4, 2, v4
    v_and_b32 v5, 7, v0
    v_xor_b32 v4, v4, v5
    v_lshl_add_u32 v3, v4, 4, v3
    s_lshl_b32 s26, s22, 7
    s_lshl_b32 s27, s20, 13
    s_lshl_b32 s28, s20, 10
    s_cmp_eq_u32 s23, 0
    s_waitcnt lgkmcnt(0)
    s_cselect_b32 s4, s4, s8
    s_cselect_b32 s5, s5, s9
    s_add_u32 s12, s4, s26
    s_addc_u32 s13, s5, 0
    s_sub_u32 s14, {512*1024}, s26
    s_mov_b32 s15, 0x20000
    s_add_u32 s16, s6, s25
    s_addc_u32 s17, s7, 0
    s_mov_b32 s18, 32768
    s_mov_b32 s19, 0x20000
    s_mov_b32 s29, 0
    """)
    for i in range(16):
        a(f"""
        s_mov_b32 m0, s28
        s_add_u32 s28, s28, 4096
        buffer_load_dwordx4 v3, s[12:15], s27 offen lds
        s_add_u32 s27, s27, 32768
        buffer_load_dwordx4 {vr(OB+8*i)}, v2, s[16:19], s29 offen
        buffer_load_dwordx4 {vr(OB+8*i+4)}, v2, s[16:19], s29 offen offset:1024
        s_add_u32 s29, s29, 2048
        """)
    a(f"""
    v_lshrrev_b32 v4, 5, v0
    v_bfe_u32 v5, v0, 2, 2
    v_lshl_add_u32 v5, v4, 2, v5
    v_lshlrev_b32 v6, 7, v5
    v_bfe_u32 v5, v0, 3, 1
    v_lshl_add_u32 v6, v5, 6, v6
    v_bfe_u32 v5, v0, 4, 1
    v_lshl_add_u32 v6, v5, 5, v6
    v_and_b32 v5, 1, v0
    v_lshl_add_u32 v6, v5, 4, v6
    v_bfe_u32 v5, v0, 1, 1
    v_lshl_add_u32 v6, v5, 3, v6
    v_xor_b32 v7, 64, v6
    v_and_b32 v5, 31, v0
    v_lshlrev_b32 v24, 11, v5
    v_lshl_add_u32 v24, v4, 4, v24
    s_and_b32 s30, s24, 63
    s_lshl_b32 s30, s30, 16
    s_lshl_b32 s31, s23, 10
    s_add_u32 s30, s30, s31
    s_add_u32 s30, s30, s26
    """)
    srd(a, 4, 10, 11, 4 << 20)
    for r in range(32): a(f"v_mov_b32 v{ACC[0]+r}, 0")
    def reads(buf, h):
        return [f"ds_read_b64_tr_b16 {vr(WB[buf]+ns*4+rd*2,2)}, v{6+ns} offset:{h*2048+rd*1024}" for ns in range(2) for rd in range(2)]
    for h in range(32):
        if h % 8 == 0:
            a(f"s_waitcnt vmcnt({36 - 12*(h//8)})\ns_barrier")
            for r in reads(h % 2, h): a(r)
        last = (h % 8 == 7)
        if not last:
            for r in reads((h + 1) % 2, h + 1): a(r)
        a(f"s_waitcnt lgkmcnt({0 if last else 4})")
        for ns in range(2):
            a(f"v_mfma_f32_32x32x16_bf16 {vr(ACC[ns],16)}, {vr(WB[h%2]+ns*4)}, {vr(OB+4*h)}, {vr(ACC[ns],16)}")
    a("s_nop 7\ns_nop 3")
    for ns in range(2):
        d = ACC[ns]
        for r in range(8): a(f"v_cvt_pk_bf16_f32 v{d+r}, v{d+2*r}, v{d+2*r+1}")
        a(f"buffer_store_dwordx4 {vr(d)}, v24, s[4:7], s30 offen offset:{ns*64}")
        a(f"buffer_store_dwordx4 {vr(d+4)}, v24, s[4:7], s30 offen offset:{ns*64+32}")
    a("Lo_done:\ns_endpgm")
    return name, a.text(), 192, "grid=(256,1,1) block=(256,1,1) lds=65536"

def build(opt=None):
    opt = opt or {}
    ref = open("cdna_kernels/" + NAME + ".s.ref").read().split("\n")
    head = []
    for line in ref:
        if line.startswith("; Override"): break
        head.append(line)
    ks = [k_qkv(opt), k_attn(opt), k_oproj(opt)]
    sel = opt.get("only")
    txt = "\n".join(head) + "\n"
    for i, (n, _, _, launch) in enumerate(ks):
        if sel is None or i in sel: txt += f"; @launch kernel={n} {launch}\n"
    txt += '.amdgcn_target "amdgcn-amd-amdhsa--gfx950"\n.text\n'
    for n, body, nv, _ in ks:
        txt += header(n) + body + descriptor(n, nv)
    return txt

if __name__ == "__main__":
    out = sys.argv[1] if len(sys.argv) > 1 else "cdna_kernels/" + NAME + ".s"
    opt = eval(sys.argv[2]) if len(sys.argv) > 2 else {}
    open(out, "w").write(build(opt))
```

```python
import sys, math, struct

NAME = "concat_heads__mha_block__softmax_full_mha__prompt"
QF, KF, VF, OF = 0, 4 << 20, 8 << 20, 12 << 20
WS_USED = 16 << 20
CSCALE = 0.25 * 1.4426950408889634

def f2u(x): return struct.unpack("<I", struct.pack("<f", x))[0]

class Asm:
    def __init__(self): self.l = []
    def __call__(self, s):
        for line in s.strip("\n").split("\n"):
            line = line.strip()
            if not line: continue
            self.l.append(line if line.endswith(":") or line.startswith(".") else "  " + line)
    def text(self): return "\n".join(self.l) + "\n"

def vr(b, n=4): return f"v[{b}:{b+n-1}]"
def sr(b, n=2): return f"s[{b}:{b+n-1}]"

def header(name):
    return f""".globl {name}
.p2align 12
.type {name},@function
{name}:
"""
def descriptor(name, nvgpr, nsgpr=102):
    acc = (nvgpr + 3) // 4 * 4
    return f""".section .rodata,"a"
.p2align 6
.amdhsa_kernel {name}
  .amdhsa_next_free_vgpr {nvgpr}
  .amdhsa_next_free_sgpr {nsgpr}
  .amdhsa_accum_offset {acc}
  .amdhsa_group_segment_fixed_size 0
  .amdhsa_kernarg_size 72
  .amdhsa_user_sgpr_count 2
  .amdhsa_user_sgpr_kernarg_segment_ptr 1
  .amdhsa_system_sgpr_workgroup_id_x 1
.end_amdhsa_kernel
.text
"""

STAMP = 64 << 20
def stamp_start(a, opt):
    if not opt.get("stamp"): return
    a("""
    s_memrealtime s[80:81]
    s_memtime s[82:83]
    s_waitcnt lgkmcnt(0)
    s_load_dwordx2 s[88:89], s[0:1], 64
    """)
def stamp_mid(a, opt, idx):
    if not opt.get("stamp"): return
    a(f"""
    s_memrealtime s[96:97]
    s_memtime s[98:99]
    s_waitcnt lgkmcnt(0)
    s_mov_b32 s{60+idx}, s96
    s_sub_u32 s{70+idx}, s98, s82
    """)
def stamp_end(a, opt, kidx, wavereg="s20", nmid=0):
    if not opt.get("stamp"): return
    a(f"""
    s_waitcnt vmcnt(0) lgkmcnt(0)
    s_memrealtime s[84:85]
    s_memtime s[86:87]
    s_waitcnt lgkmcnt(0)
    s_sub_u32 s86, s86, s82
    s_mov_b32 s92, s88
    s_mov_b32 s93, s89
    s_mov_b32 s94, {STAMP + (1 << 21)}
    s_mov_b32 s95, 0x20000
    s_lshl_b32 s90, s2, 4
    s_add_u32 s90, s90, {wavereg}
    s_lshl_b32 s90, s90, 6
    s_add_u32 s90, s90, {STAMP + kidx * 262144}
    s_getreg_b32 s91, hwreg(HW_REG_XCC_ID)
    s_getreg_b32 s87, hwreg(HW_REG_HW_ID)
    v_mov_b32 v8, s80
    v_mov_b32 v9, s84
    v_mov_b32 v10, s86
    s_and_b32 s91, s91, 15
    s_lshl_b32 s87, s87, 4
    s_or_b32 s91, s91, s87
    v_mov_b32 v11, s91
    """)
    for i in range(6):
        a(f"v_mov_b32 v{12+i}, s{60+i}" if i < nmid else f"v_mov_b32 v{12+i}, 0")
        a(f"v_mov_b32 v{18+i}, s{70+i}" if i < nmid else f"v_mov_b32 v{18+i}, 0")
    if opt.get("stamp") == 2:
        lab = f"Lstamp_skip_{kidx}_{nmid}"
        a(f"""
        s_load_dwordx2 s[92:93], s[0:1], 56
        s_waitcnt lgkmcnt(0)
        s_add_u32 s92, s92, {512*(2-kidx)}
        s_addc_u32 s93, s93, 0
        s_mov_b32 s94, 256
        s_or_b32 s90, s2, {wavereg}
        s_cmp_lg_u32 s90, 0
        s_cbranch_scc1 {lab}
        v_mov_b32 v1, 0
        s_mov_b64 exec, 1
        buffer_store_dword v8, v1, s[92:95], 0 offen offset:{kidx*20}
        buffer_store_dword v12, v1, s[92:95], 0 offen offset:{kidx*20+4}
        buffer_store_dword v{12+nmid-2}, v1, s[92:95], 0 offen offset:{kidx*20+8}
        buffer_store_dword v{12+nmid-1}, v1, s[92:95], 0 offen offset:{kidx*20+12}
        buffer_store_dword v9, v1, s[92:95], 0 offen offset:{kidx*20+16}
        s_waitcnt vmcnt(0)
        {lab}:
        """)
        return
    a(f"""
    v_mov_b32 v1, 0
    s_mov_b64 exec, 1
    buffer_store_dwordx4 v[8:11], v1, s[92:95], s90 offen
    buffer_store_dwordx4 v[12:15], v1, s[92:95], s90 offen offset:16
    buffer_store_dwordx4 v[16:19], v1, s[92:95], s90 offen offset:32
    buffer_store_dwordx4 v[20:23], v1, s[92:95], s90 offen offset:48
    s_waitcnt vmcnt(0)
    """)

def srd(a, d, lo, hi, nbytes):
    a(f"""
    s_mov_b32 s{d}, s{lo}
    s_mov_b32 s{d+1}, s{hi}
    s_mov_b32 s{d+2}, {nbytes}
    s_mov_b32 s{d+3}, 0x20000
    """)

def k_qkv(opt):
    name = "mha_qkv_kernel"
    a = Asm()
    SLOT = 40960
    a(f"""
    s_cmp_ge_u32 s2, 256
    s_cbranch_scc1 Lq_done
    """)
    stamp_start(a, opt)
    a(f"""
    s_load_dwordx4 s[4:7], s[0:1], 0
    s_load_dwordx4 s[8:11], s[0:1], 24
    s_load_dwordx2 s[12:13], s[0:1], 64
    v_lshrrev_b32 v1, 6, v0
    v_and_b32 v0, 63, v0
    s_and_b32 s14, s2, 7
    v_readfirstlane_b32 s20, v1
    s_lshr_b32 s15, s2, 3
    """)
    if opt.get("qkv_map", 0) == 0:
        a("""
        s_and_b32 s16, s14, 1
        s_lshl_b32 s16, s16, 3
        s_and_b32 s17, s15, 7
        s_add_u32 s21, s16, s17
        s_bfe_u32 s16, s14, 0x10001
        s_lshl_b32 s16, s16, 2
        s_lshr_b32 s17, s15, 3
        s_add_u32 s22, s16, s17
        """)
    else:
        a("""
        s_lshr_b32 s21, s15, 1
        s_and_b32 s16, s14, 3
        s_lshl_b32 s16, s16, 1
        s_and_b32 s17, s15, 1
        s_add_u32 s22, s16, s17
        """)
    a("""
    s_lshr_b32 s23, s14, 2
    s_cmp_eq_u32 s23, 0
    s_waitcnt lgkmcnt(0)
    s_cselect_b32 s4, s4, s8
    s_cselect_b32 s5, s5, s9
    s_cselect_b32 s6, s6, s10
    s_cselect_b32 s7, s7, s11
    """)
    stamp_mid(a, opt, 0)
    a("""
    s_cmp_ge_u32 s20, 4
    s_cbranch_scc1 Lq_loader
    """)
    ACC = 16
    XB = [112, 120]
    WB = [128, 140]
    VXB, VWB = 2, 6
    VX, VW = 8, 12
    def acc(seg, i): return ACC + (seg * 2 + i) * 16
    a(f"""
    s_lshr_b32 s24, s20, 1
    s_and_b32 s25, s20, 1
    v_and_b32 v13, 31, v0
    v_lshrrev_b32 v14, 5, v0
    v_bfe_u32 v15, v0, 1, 3
    s_lshl_b32 s26, s24, 13
    v_lshlrev_b32 v13, 7, v13
    v_add_u32 v13, s26, v13
    """)
    for ks in range(4):
        a(f"""
        v_add_u32 v7, {2*ks}, v14
        v_xor_b32 v7, v7, v15
        v_lshl_add_u32 v{VXB+ks}, v7, 4, v13
        """)
    a(f"""
    v_bfe_u32 v7, v0, 2, 2
    v_lshl_add_u32 v7, v14, 3, v7
    v_mul_u32_u24 v7, 384, v7
    v_bfe_u32 v13, v0, 3, 1
    v_xor_b32 v13, s25, v13
    v_lshl_add_u32 v7, v13, 6, v7
    v_bfe_u32 v13, v0, 4, 1
    v_lshl_add_u32 v7, v13, 5, v7
    v_and_b32 v13, 3, v0
    v_lshl_add_u32 v7, v13, 3, v7
    v_add_u32 v{VWB}, 16384, v7
    """)
    for r in range(ACC, ACC + 96): a(f"v_mov_b32 v{r}, 0")
    for ks in range(4): a(f"v_mov_b32 v{VX+ks}, v{VXB+ks}")
    a(f"v_mov_b32 v{VW}, v{VWB}")
    a(f"""
    s_lshl_b32 s27, s23, 5
    s_lshl_b32 s28, s22, 2
    s_add_u32 s27, s27, s28
    s_lshl_b32 s28, s25, 1
    s_add_u32 s27, s27, s28
    s_lshl_b32 s27, s27, 16
    s_lshl_b32 s28, s21, 2
    s_lshl_b32 s29, s24, 1
    s_add_u32 s28, s28, s29
    s_lshl_b32 s28, s28, 10
    s_add_u32 s28, s27, s28
    s_add_u32 s29, s28, {KF}
    s_add_u32 s30, s28, {VF}
    v_lshlrev_b32 v152, 4, v0
    v_bfe_u32 v7, v0, 2, 1
    v_bfe_u32 v13, v0, 3, 1
    v_and_b32 v153, 0x33, v0
    v_lshl_or_b32 v153, v7, 3, v153
    v_lshl_or_b32 v153, v13, 2, v153
    v_lshlrev_b32 v153, 4, v153
    v_and_b32 v154, 15, v0
    v_lshl_or_b32 v154, v14, 4, v154
    v_lshlrev_b32 v154, 4, v154
    v_bfe_u32 v7, v0, 4, 1
    v_lshl_or_b32 v154, v7, 16, v154
    v_add_u32 v155, 0x10000, v152
    v_add_u32 v156, 0x10000, v153
    """)
    srd(a, 16, 12, 13, OF)
    def reads(buf, ks):
        L = [f"ds_read_b128 {vr(XB[buf])}, v{VX+ks}"]
        for seg in range(3):
            for rd in range(2):
                L.append(f"ds_read_b64_tr_b16 {vr(WB[buf]+seg*4+rd*2, 2)}, v{VW} offset:{ks*6144+rd*1536+seg*128}")
        L.insert(3, f"ds_read_b128 {vr(XB[buf]+4)}, v{VX+ks} offset:4096")
        return L
    def mfmas(buf):
        L = []
        for i in range(2):
            for seg in range(3):
                w = vr(WB[buf] + seg * 4); x = vr(XB[buf] + i * 4); d = vr(acc(seg, i), 16)
                L.append(f"v_mfma_f32_32x32x16_bf16 {d}, {w}, {x}, {d}" if seg < 2 else f"v_mfma_f32_32x32x16_bf16 {d}, {x}, {w}, {d}")
        return L
    a("s_mov_b32 s31, 0\ns_mov_b32 s32, 0\ns_barrier")
    stamp_mid(a, opt, 1)
    for r in reads(0, 0): a(r)
    a("Lq_loop:")
    for ks in range(4):
        cur, nxt = ks % 2, (ks + 1) % 2
        M = mfmas(cur)
        a("s_waitcnt lgkmcnt(0)")
        if ks < 3:
            R = reads(nxt, ks + 1)
            seq = [M[0]] + R[0:3] + [M[1]] + R[3:6] + [M[2]] + R[6:8] + M[3:]
            for s in seq: a(s)
        else:
            R = reads(nxt, 0)
            a(M[0]); a(M[1])
            a(f"""
            s_cmp_eq_u32 s31, 7
            s_cbranch_scc1 Lq_last
            s_add_u32 s32, s32, {SLOT}
            s_cmp_eq_u32 s32, {4*SLOT}
            s_cselect_b32 s32, 0, s32
            s_add_u32 s31, s31, 1
            """)
            a(f"v_add_u32 v{VX}, s32, v{VXB}\nv_add_u32 v{VW}, s32, v{VWB}")
            a("s_barrier")
            seq = R[0:3] + [f"v_add_u32 v{VX+1}, s32, v{VXB+1}", M[2]] + R[3:6] + [f"v_add_u32 v{VX+2}, s32, v{VXB+2}", M[3]] + R[6:8] + [f"v_add_u32 v{VX+3}, s32, v{VXB+3}"] + M[4:]
            for s in seq: a(s)
            a("s_branch Lq_loop")
            a("Lq_last:")
            for m in M[2:]: a(m)
    stamp_mid(a, opt, 2)
    a(f"s_mov_b32 s33, {hex(f2u(CSCALE))}")
    a("s_nop 7")
    order = [(0, 0), (1, 0), (2, 0), (0, 1), (1, 1), (2, 1)]
    a("s_nop 7")
    for (seg, i) in order:
        d = acc(seg, i)
        if seg == 0:
            for r in range(16): a(f"v_mul_f32 v{d+r}, s33, v{d+r}")
        for r in range(8): a(f"v_cvt_pk_bf16_f32 v{d+r}, v{d+2*r}, v{d+2*r+1}")
        if seg == 0:
            a(f"buffer_store_dwordx4 {vr(d)}, v152, s[16:19], s28 offen offset:{i*1024}")
            a(f"buffer_store_dwordx4 {vr(d+4)}, v155, s[16:19], s28 offen offset:{i*1024}")
        elif seg == 1:
            a(f"buffer_store_dwordx4 {vr(d)}, v153, s[16:19], s29 offen offset:{i*1024}")
            a(f"buffer_store_dwordx4 {vr(d+4)}, v156, s[16:19], s29 offen offset:{i*1024}")
        else:
            a(f"buffer_store_dwordx4 {vr(d)}, v154, s[16:19], s30 offen offset:{i*1024}")
            a(f"buffer_store_dwordx4 {vr(d+4)}, v154, s[16:19], s30 offen offset:{i*1024+512}")
    stamp_end(a, opt, 0, nmid=3)
    a("s_endpgm")
    a("Lq_loader:")
    a(f"""
    s_sub_u32 s24, s20, 4
    s_lshl_b32 s25, s21, 17
    s_add_u32 s4, s4, s25
    s_addc_u32 s5, s5, 0
    s_lshl_b32 s25, s22, 7
    s_add_u32 s6, s6, s25
    s_addc_u32 s7, s7, 0
    s_sub_u32 s26, {512*3072}, s25
    """)
    srd(a, 8, 4, 5, 131072)
    a(f"""
    s_mov_b32 s12, s6
    s_mov_b32 s13, s7
    s_mov_b32 s14, s26
    s_mov_b32 s15, 0x20000
    v_lshrrev_b32 v1, 3, v0
    v_lshlrev_b32 v1, 10, v1
    s_lshl_b32 s25, s24, 15
    v_add_u32 v1, s25, v1
    v_and_b32 v2, 7, v0
    v_lshrrev_b32 v3, 4, v0
    v_xor_b32 v4, v2, v3
    v_lshl_add_u32 v10, v4, 4, v1
    v_xor_b32 v4, 4, v4
    v_lshl_add_u32 v11, v4, 4, v1
    s_lshl_b32 s25, s24, 4
    s_movk_i32 s27, 2731
    """)
    for t3 in range(3):
        a(f"""
        v_add_u32 v1, {64*t3}, v0
        v_mul_lo_u32 v2, v1, s27
        v_lshrrev_b32 v2, 16, v2
        v_mul_u32_u24 v3, 24, v2
        v_sub_u32 v3, v1, v3
        v_lshrrev_b32 v4, 2, v3
        v_bfe_u32 v5, v2, 1, 1
        v_xor_b32 v4, v4, v5
        v_add_u32 v2, s25, v2
        v_mul_u32_u24 v2, 3072, v2
        v_lshrrev_b32 v5, 1, v4
        v_lshl_add_u32 v2, v5, 10, v2
        v_and_b32 v5, 1, v4
        v_lshl_add_u32 v2, v5, 6, v2
        v_and_b32 v5, 3, v3
        v_lshl_add_u32 v{12+t3}, v5, 4, v2
        """)
    a(f"""
    s_mov_b32 s30, 0
    s_mov_b32 s31, 0
    s_mov_b32 s32, 0
    s_lshl_b32 s33, s24, 12
    s_mul_i32 s34, s24, 6144
    s_add_u32 s34, s34, 16384
    Lq_lloop:
    s_cmp_lt_u32 s30, 4
    s_cbranch_scc1 Lq_issue
    s_cmp_lg_u32 s30, 4
    s_cbranch_scc1 Lq_l1
    """)
    stamp_mid(a, opt, 1)
    a(f"""
    s_waitcnt vmcnt(30)
    s_barrier
    Lq_l1:
    s_waitcnt vmcnt(20)
    s_barrier
    Lq_issue:
    """)
    for i in range(4):
        a(f"""
        s_add_u32 m0, s33, {i*1024}
        s_add_u32 s35, s31, {i*8192}
        buffer_load_dwordx4 v{10+(i&1)}, s[8:11], s35 offen lds
        """)
    for g in range(2):
        for t3 in range(3):
            a(f"""
            s_add_u32 m0, s34, {g*3072+t3*1024}
            s_add_u32 s35, s32, {g*8*3072}
            buffer_load_dwordx4 v{12+t3}, s[12:15], s35 offen lds
            """)
    a(f"""
    s_add_u32 s30, s30, 1
    s_add_u32 s31, s31, 128
    s_add_u32 s32, s32, {64*3072}
    s_mov_b32 s35, {SLOT}
    s_cmp_eq_u32 s30, 4
    s_cselect_b32 s35, {-3*SLOT & 0xffffffff}, s35
    s_add_u32 s33, s33, s35
    s_add_u32 s34, s34, s35
    s_cmp_lt_u32 s30, 8
    s_cbranch_scc1 Lq_lloop
    s_waitcnt vmcnt(20)
    s_barrier
    s_waitcnt vmcnt(10)
    s_barrier
    s_waitcnt vmcnt(0)
    s_barrier
    """)
    stamp_end(a, opt, 0, nmid=2)
    a("Lq_done:\ns_endpgm")
    return name, a.text(), 160, "grid=(256,1,1) block=(512,1,1) lds=163840"

def k_attn(opt):
    name = "mha_attn_kernel"
    a = Asm()
    ZR = opt.get("zrows", 0)
    VBASE, VSTR = 65536, (1056 if ZR else 1040)
    Q = [8, 12]; K = [16, 20]; V = [[24, 28], [32, 36]]; S = [40, 56]; O = [72, 88]
    IDX, VK, VV0, VV1, VLANE = 7, 2, 3, 4, 5
    NEG = 104
    UNR = opt.get("unr", 8)
    a(f"""
    s_cmp_ge_u32 s2, 256
    s_cbranch_scc1 La_done
    """)
    stamp_start(a, opt)
    a(f"""
    s_load_dwordx2 s[4:5], s[0:1], 64
    v_lshrrev_b32 v1, 6, v0
    v_and_b32 v0, 63, v0
    s_and_b32 s21, s2, 63
    v_readfirstlane_b32 s20, v1
    s_lshr_b32 s22, s2, 6
    v_lshlrev_b32 v{VLANE}, 4, v0
    """)
    if opt.get("qkv_map", 0) == 1:
        a("""
        s_and_b32 s23, s2, 7
        s_lshl_b32 s23, s23, 3
        s_bfe_u32 s21, s2, 0x30003
        s_add_u32 s21, s21, s23
        """)
    a(f"""
    s_lshl_b32 s23, s21, 16
    s_and_b32 s24, s20, 1
    s_lshr_b32 s25, s20, 1
    s_lshl_b32 s26, s24, 22
    s_add_u32 s26, s26, s23
    s_add_u32 s26, s26, {KF}
    s_lshl_b32 s27, s22, 4
    s_lshl_b32 s28, s20, 1
    s_add_u32 s27, s27, s28
    s_lshl_b32 s28, s27, 10
    s_add_u32 s28, s28, s23
    s_lshl_b32 s29, s25, 10
    s_movk_i32 s30, 1024
    s_cmp_eq_u32 s24, 0
    s_cselect_b32 s30, s30, {VSTR}
    s_cselect_b32 s31, 0, {VBASE}
    s_mul_i32 s32, s25, s30
    s_add_u32 s31, s31, s32
    s_lshl_b32 s30, s30, 2
    s_waitcnt lgkmcnt(0)
    """)
    stamp_mid(a, opt, 0)
    a(f"""
    s_add_u32 s8, s4, s26
    s_addc_u32 s9, s5, 0
    s_mov_b32 s10, 65536
    s_mov_b32 s11, 0x20000
    """)
    srd(a, 12, 4, 5, WS_USED)
    a(f"""
    buffer_load_dwordx4 {vr(Q[0])}, v{VLANE}, s[12:15], s28 offen
    buffer_load_dwordx4 {vr(Q[1])}, v{VLANE}, s[12:15], s28 offen offset:1024
    """)
    for i in range(16):
        a(f"""
        s_mov_b32 m0, s31
        s_add_u32 s31, s31, s30
        buffer_load_dwordx4 v{VLANE}, s[8:11], s29 offen lds
        s_add_u32 s29, s29, 4096
        """)
    stamp_mid(a, opt, 1)
    a(f"""
    v_mov_b32 v{S[0]}, 0x3f803f80
    v_mov_b32 v{S[0]+1}, 0x3f803f80
    v_mov_b32 v{S[0]+2}, 0x3f803f80
    v_mov_b32 v{S[0]+3}, 0x3f803f80
    v_mul_u32_u24 v1, {VSTR}, v0
    v_add_u32 v1, {VBASE+1024}, v1
    s_cmp_lg_u32 s20, 0
    s_cbranch_scc1 La_noones
    ds_write_b128 v1, {vr(S[0])}
    """)
    if ZR:
        a(f"""
        v_mov_b32 v{S[0]+4}, 0
        v_mov_b32 v{S[0]+5}, 0
        v_mov_b32 v{S[0]+6}, 0
        v_mov_b32 v{S[0]+7}, 0
        ds_write_b128 v1, {vr(S[0]+4)} offset:16
        """)
    a(f"""
    La_noones:
    v_mov_b32 v{VK}, v{VLANE}
    v_and_b32 v1, 15, v0
    v_lshrrev_b32 v6, 5, v0
    v_lshl_or_b32 v1, v6, 4, v1
    v_lshlrev_b32 v1, 4, v1
    v_add_u32 v{VV0}, {VBASE}, v1
    v_add_u32 v{VV1}, {VBASE+512}, v1
    v_mov_b32 v1, {VBASE+1024}
    """)
    if ZR:
        a(f"""
        v_and_b32 v6, 27, v0
        v_cmp_ne_u32 vcc, 16, v6
        v_mov_b32 v6, {VBASE+1040}
        s_nop 0
        v_cndmask_b32 v1, v1, v6, vcc
        """)
    a(f"""
    v_and_b32 v6, 16, v0
    v_cmp_ne_u32 vcc, 0, v6
    v_mov_b32 v{IDX}, 0xdddddddd
    v_mov_b32 v{S[1]+8}, 0
    v_cndmask_b32 v{VV0}, v{VV0}, v1, vcc
    v_cndmask_b32 v{VV1}, v{VV1}, v1, vcc
    """)
    for r in range(S[1] + 9, S[1] + 16): a(f"v_mov_b32 v{r}, 0")
    for r in range(4): a(f"v_mov_b32 v{V[1][1]+r}, 0")
    for r in range(32): a(f"v_mov_b32 v{O[0]+r}, 0")
    a(f"""
    s_lshr_b32 s33, s21, 5
    s_lshl_b32 s33, s33, 6
    s_add_u32 s33, s33, s27
    s_lshl_b32 s33, s33, 5
    s_and_b32 s34, s21, 31
    s_add_u32 s33, s33, s34
    s_lshl_b32 s33, s33, 10
    s_add_u32 s33, s33, {OF}
    s_add_u32 s34, s33, 32768
    s_mov_b32 s35, 0
    s_waitcnt vmcnt({16 - (UNR + 3) // 4}) lgkmcnt(0)
    s_barrier
    """)
    stamp_mid(a, opt, 2)
    a(f"""
    ds_read_b128 {vr(K[0])}, v{VK}
    ds_read_b128 {vr(V[0][0])}, v{VV0}
    ds_read_b128 {vr(V[0][1])}, v{VV1}
    s_waitcnt lgkmcnt(0)
    v_mfma_f32_32x32x16_bf16 {vr(S[0],16)}, {vr(K[0])}, {vr(Q[0])}, 0
    s_nop 7
    s_nop 3
    .p2align 3
    La_loop:
    """)
    t = 2
    N = UNR * t
    for u in range(N):
        kt, q = divmod(u, t)
        pkt, pq = divmod((u - 1) % N, t)
        nkt, nq = divmod((u + 1) % N, t)
        s = S[u % 2]; sp = S[(u - 1) % 2]; sn = S[(u + 1) % 2]
        ex = [f"v_exp_f32 v{s+i}, v{s+i}" for i in range(16)]
        pv2 = f"v_smfmac_f32_32x32x32_bf16 {vr(O[pq],16)}, {vr(V[pkt%2][1])}, {vr(sp+8,8)}, v{IDX}"
        pv1 = f"v_smfmac_f32_32x32x32_bf16 {vr(O[q],16)}, {vr(V[kt%2][0])}, {vr(s,8)}, v{IDX}"
        qk = f"v_mfma_f32_32x32x16_bf16 {vr(sn,16)}, {vr(K[nkt%2])}, {vr(Q[nq])}, 0"
        em = opt.get("exp_mode", "exp")
        if em == "mov": ex = [f"v_mov_b32 v{s+i}, v{s+i}\ns_nop 0" for i in range(16)]
        if em == "none": ex = ["" for i in range(16)]
        if em == "expx": ex = [f"v_exp_f32 v{104+i}, v{s+i}" for i in range(16)]
        if not opt.get("pv", 1): pv1 = pv2 = ""
        if opt.get("pv", 1) == 2: pv2 = ""
        if not opt.get("qk", 1): qk = ""
        seq = ex[:2] + [pv2]
        if q == 0:
            nb = (kt + 1) % 2
            if kt == UNR - 1:
                seq += ["s_cmp_lg_u32 s35, 0", "s_cbranch_scc1 La_skipw", "s_waitcnt vmcnt(0)", "s_barrier", "La_skipw:"]
            seq += [f"ds_read_b128 {vr(K[nb])}, v{VK} offset:{(kt+1)*1024}",
                    f"ds_read_b128 {vr(V[nb][0])}, v{VV0} offset:{(kt+1)*VSTR}",
                    f"ds_read_b128 {vr(V[nb][1])}, v{VV1} offset:{(kt+1)*VSTR}"]
        seq += ex[2:5]
        if q == 1: seq += ["s_waitcnt lgkmcnt(0)"]
        seq += [qk] + ex[5:10] + [pv1]
        if kt == UNR - 1 and q == 1:
            seq += [f"v_add_u32 v{VK}, {UNR*1024}, v{VK}", f"v_add_u32 v{VV0}, {UNR*VSTR}, v{VV0}", f"v_add_u32 v{VV1}, {UNR*VSTR}, v{VV1}",
                    f"s_add_u32 s35, s35, 1", f"s_cmp_lt_u32 s35, {64//UNR}"]
        seq += ex[10:]
        for x in seq: a(x)
    a("s_cbranch_scc1 La_loop")
    stamp_mid(a, opt, 3)
    pkt, pq = divmod(N - 1, t)
    a(f"""
    s_nop 1
    v_smfmac_f32_32x32x32_bf16 {vr(O[pq],16)}, {vr(V[pkt%2][1])}, {vr(S[(N-1)%2]+8,8)}, v{IDX}
    s_mov_b32 s36, {hex(f2u(2.0**-32))}
    s_mov_b32 s37, {hex(f2u(2.0**32))}
    s_nop 7
    s_nop 3
    """)
    z = S[0]
    a(f"v_mul_f32 v{z}, 0, v{O[0]}")
    for r in list(range(1, 8)) + list(range(16, 24)): a(f"v_fmac_f32 v{z}, 0, v{O[0]+r}")
    a(f"""
    v_min_f32 v{z+1}, v{O[0]+8}, v{O[1]+8}
    v_max_f32 v{z+2}, v{O[0]+8}, v{O[1]+8}
    v_add_f32 v{z+3}, v{O[0]+8}, v{O[1]+8}
    v_fmac_f32 v{z}, 0, v{z+3}
    v_cmp_nge_f32 s[38:39], v{z+1}, s36
    v_cmp_nle_f32 s[40:41], v{z+2}, s37
    v_cmp_neq_f32 vcc, 0, v{z}
    s_nop 1
    s_or_b64 s[38:39], s[38:39], s[40:41]
    s_or_b64 vcc, vcc, s[38:39]
    s_cbranch_vccnz La_slow
    La_fin:
    """)
    for q in range(2):
        o = O[q]
        a(f"v_rcp_f32 v{z}, v{o+8}\ns_nop 0")
        for r in range(8): a(f"v_mul_f32 v{o+r}, v{z}, v{o+r}")
        for r in range(4): a(f"v_cvt_pk_bf16_f32 v{o+r}, v{o+2*r}, v{o+2*r+1}")
        a(f"buffer_store_dwordx4 {vr(o)}, v{VLANE}, s[12:15], s{33+q} offen")
    stamp_end(a, opt, 1, nmid=4)
    a("La_done:\ns_endpgm")
    a("La_slow:")
    a(f"""
    v_subrev_u32 v{VK}, {64*1024}, v{VK}
    v_subrev_u32 v{VV0}, {64*VSTR}, v{VV0}
    v_subrev_u32 v{VV1}, {64*VSTR}, v{VV1}
    """)
    for q in range(2):
        s = S[0]
        a(f"""
        v_mov_b32 v1, 0xff800000
        v_mov_b32 v6, v{VK}
        s_mov_b32 s35, 0
        La_max{q}:
        ds_read_b128 {vr(K[0])}, v6
        v_add_u32 v6, 1024, v6
        s_waitcnt lgkmcnt(0)
        v_mfma_f32_32x32x16_bf16 {vr(s,16)}, {vr(K[0])}, {vr(Q[q])}, 0
        s_nop 7
        s_nop 7
        """)
        for r in range(8): a(f"v_max3_f32 v1, v1, v{s+2*r}, v{s+2*r+1}")
        a(f"""
        s_add_u32 s35, s35, 1
        s_cmp_lt_u32 s35, 64
        s_cbranch_scc1 La_max{q}
        v_mov_b32 v6, v1
        s_nop 1
        v_permlane32_swap_b32 v1, v6
        s_nop 1
        v_max_f32 v1, v1, v6
        """)
        for r in range(16): a(f"v_sub_f32 v{NEG+r}, 0, v1")
        for r in range(16): a(f"v_mov_b32 v{O[q]+r}, 0")
        a(f"""
        v_mov_b32 v6, v{VK}
        v_mov_b32 v120, v{VV0}
        v_mov_b32 v121, v{VV1}
        s_mov_b32 s35, 0
        La_acc{q}:
        ds_read_b128 {vr(K[0])}, v6
        ds_read_b128 {vr(V[0][0])}, v120
        ds_read_b128 {vr(V[0][1])}, v121
        v_add_u32 v6, 1024, v6
        v_add_u32 v120, {VSTR}, v120
        v_add_u32 v121, {VSTR}, v121
        s_waitcnt lgkmcnt(0)
        v_mfma_f32_32x32x16_bf16 {vr(s,16)}, {vr(K[0])}, {vr(Q[q])}, {vr(NEG,16)}
        s_nop 7
        s_nop 7
        """)
        for r in range(16): a(f"v_exp_f32 v{s+r}, v{s+r}")
        a(f"""
        s_nop 2
        v_smfmac_f32_32x32x32_bf16 {vr(O[q],16)}, {vr(V[0][0])}, {vr(s,8)}, v{IDX}
        v_smfmac_f32_32x32x32_bf16 {vr(O[q],16)}, {vr(V[0][1])}, {vr(s+8,8)}, v{IDX}
        s_add_u32 s35, s35, 1
        s_cmp_lt_u32 s35, 64
        s_cbranch_scc1 La_acc{q}
        s_nop 7
        s_nop 7
        """)
    a("s_branch La_fin")
    return name, a.text(), 128, "grid=(256,1,1) block=(512,1,1) lds=134656"

def k_oproj(opt):
    name = "mha_oproj_kernel"
    a = Asm()
    OB = 32
    ACC = [160, 176]
    WB = [8, 16]
    a(f"""
    s_cmp_ge_u32 s2, 256
    s_cbranch_scc1 Lo_done
    """)
    stamp_start(a, opt)
    a(f"""
    s_load_dwordx2 s[4:5], s[0:1], 16
    s_load_dwordx4 s[8:11], s[0:1], 40
    s_load_dwordx2 s[6:7], s[0:1], 64
    v_lshrrev_b32 v1, 6, v0
    v_and_b32 v0, 63, v0
    s_and_b32 s14, s2, 7
    v_readfirstlane_b32 s20, v1
    s_lshr_b32 s15, s2, 3
    s_lshl_b32 s21, s14, 2
    s_lshr_b32 s22, s15, 3
    s_add_u32 s21, s21, s22
    s_and_b32 s22, s15, 7
    s_lshr_b32 s23, s21, 4
    s_lshl_b32 s24, s21, 2
    s_add_u32 s24, s24, s20
    s_lshl_b32 s25, s24, 15
    s_add_u32 s25, s25, {OF}
    v_lshlrev_b32 v2, 4, v0
    v_lshrrev_b32 v3, 3, v0
    v_lshlrev_b32 v3, 10, v3
    v_bfe_u32 v4, v0, 4, 1
    v_lshlrev_b32 v4, 2, v4
    v_and_b32 v5, 7, v0
    v_xor_b32 v4, v4, v5
    v_lshl_add_u32 v3, v4, 4, v3
    s_lshl_b32 s26, s22, 7
    s_lshl_b32 s27, s20, 13
    s_lshl_b32 s28, s20, 10
    s_cmp_eq_u32 s23, 0
    s_waitcnt lgkmcnt(0)
    s_cselect_b32 s4, s4, s8
    s_cselect_b32 s5, s5, s9
    """)
    stamp_mid(a, opt, 0)
    a(f"""
    s_add_u32 s12, s4, s26
    s_addc_u32 s13, s5, 0
    s_sub_u32 s14, {512*1024}, s26
    s_mov_b32 s15, 0x20000
    s_add_u32 s16, s6, s25
    s_addc_u32 s17, s7, 0
    s_mov_b32 s18, 32768
    s_mov_b32 s19, 0x20000
    s_mov_b32 s29, 0
    """)
    for i in range(16):
        a(f"""
        s_mov_b32 m0, s28
        s_add_u32 s28, s28, 4096
        buffer_load_dwordx4 v3, s[12:15], s27 offen lds
        s_add_u32 s27, s27, 32768
        buffer_load_dwordx4 {vr(OB+8*i)}, v2, s[16:19], s29 offen
        buffer_load_dwordx4 {vr(OB+8*i+4)}, v2, s[16:19], s29 offen offset:1024
        s_add_u32 s29, s29, 2048
        """)
    stamp_mid(a, opt, 1)
    a(f"""
    v_lshrrev_b32 v4, 5, v0
    v_bfe_u32 v5, v0, 2, 2
    v_lshl_add_u32 v5, v4, 2, v5
    v_lshlrev_b32 v6, 7, v5
    v_bfe_u32 v5, v0, 3, 1
    v_lshl_add_u32 v6, v5, 6, v6
    v_bfe_u32 v5, v0, 4, 1
    v_lshl_add_u32 v6, v5, 5, v6
    v_and_b32 v5, 1, v0
    v_lshl_add_u32 v6, v5, 4, v6
    v_bfe_u32 v5, v0, 1, 1
    v_lshl_add_u32 v6, v5, 3, v6
    v_xor_b32 v7, 64, v6
    v_and_b32 v5, 31, v0
    v_lshlrev_b32 v24, 11, v5
    v_lshl_add_u32 v24, v4, 4, v24
    s_and_b32 s30, s24, 63
    s_lshl_b32 s30, s30, 16
    s_lshl_b32 s31, s23, 10
    s_add_u32 s30, s30, s31
    s_add_u32 s30, s30, s26
    """)
    srd(a, 4, 10, 11, 4 << 20)
    for r in range(32): a(f"v_mov_b32 v{ACC[0]+r}, 0")
    def reads(buf, h):
        return [f"ds_read_b64_tr_b16 {vr(WB[buf]+ns*4+rd*2,2)}, v{6+ns} offset:{h*2048+rd*1024}" for ns in range(2) for rd in range(2)]
    for h in range(32):
        if h % 8 == 0:
            a(f"s_waitcnt vmcnt({36 - 12*(h//8)})\ns_barrier")
            if h == 0: stamp_mid(a, opt, 2)
            for r in reads(h % 2, h): a(r)
        last = (h % 8 == 7)
        if not last:
            for r in reads((h + 1) % 2, h + 1): a(r)
        a(f"s_waitcnt lgkmcnt({0 if last else 4})")
        for ns in range(2):
            a(f"v_mfma_f32_32x32x16_bf16 {vr(ACC[ns],16)}, {vr(WB[h%2]+ns*4)}, {vr(OB+4*h)}, {vr(ACC[ns],16)}")
    stamp_mid(a, opt, 3)
    a("s_nop 7\ns_nop 3")
    for ns in range(2):
        d = ACC[ns]
        for r in range(8): a(f"v_cvt_pk_bf16_f32 v{d+r}, v{d+2*r}, v{d+2*r+1}")
        a(f"buffer_store_dwordx4 {vr(d)}, v24, s[4:7], s30 offen offset:{ns*64}")
        a(f"buffer_store_dwordx4 {vr(d+4)}, v24, s[4:7], s30 offen offset:{ns*64+32}")
    stamp_end(a, opt, 2, nmid=4)
    a("Lo_done:\ns_endpgm")
    return name, a.text(), 192, "grid=(256,1,1) block=(256,1,1) lds=65536"

def build(opt=None):
    opt = opt or {}
    ref = open("cdna_kernels/" + NAME + ".s.ref").read().split("\n")
    head = []
    for line in ref:
        if line.startswith("; Override"): break
        head.append(line)
    ks = [k_qkv(opt), k_attn(opt), k_oproj(opt)]
    sel = opt.get("only")
    ks.append(("mha_nop_kernel", "  s_endpgm\n", 8, "grid=(1,1,1) block=(64,1,1) lds=0"))
    txt = "\n".join(head) + "\n"
    sel = sel or [0, 1, 2]
    for i in sel: txt += f"; @launch kernel={ks[i][0]} {ks[i][3]}\n"
    ks = [k for i, k in enumerate(ks) if i in sel]
    txt += '.amdgcn_target "amdgcn-amd-amdhsa--gfx950"\n.text\n'
    for n, body, nv, _ in ks:
        txt += header(n) + body + descriptor(n, nv)
    return txt

if __name__ == "__main__":
    out = sys.argv[1] if len(sys.argv) > 1 else "cdna_kernels/" + NAME + ".s"
    opt = eval(sys.argv[2]) if len(sys.argv) > 2 else {}
    open(out, "w").write(build(opt))
```

```python
import sys, math, struct

NAME = "concat_heads__mha_block__softmax_full_mha__prompt"
QF, KF, VF, OF = 0, 4 << 20, 8 << 20, 12 << 20
WS_USED = 16 << 20
CSCALE = 0.25 * 1.4426950408889634

def f2u(x): return struct.unpack("<I", struct.pack("<f", x))[0]

class Asm:
    def __init__(self): self.l = []
    def __call__(self, s):
        for line in s.strip("\n").split("\n"):
            line = line.strip()
            if not line: continue
            self.l.append(line if line.endswith(":") or line.startswith(".") else "  " + line)
    def text(self): return "\n".join(self.l) + "\n"

def vr(b, n=4): return f"v[{b}:{b+n-1}]"
def sr(b, n=2): return f"s[{b}:{b+n-1}]"

def header(name):
    return f""".globl {name}
.p2align 12
.type {name},@function
{name}:
"""
def descriptor(name, nvgpr, nsgpr=102):
    acc = (nvgpr + 3) // 4 * 4
    return f""".section .rodata,"a"
.p2align 6
.amdhsa_kernel {name}
  .amdhsa_next_free_vgpr {nvgpr}
  .amdhsa_next_free_sgpr {nsgpr}
  .amdhsa_accum_offset {acc}
  .amdhsa_group_segment_fixed_size 0
  .amdhsa_kernarg_size 72
  .amdhsa_user_sgpr_count 2
  .amdhsa_user_sgpr_kernarg_segment_ptr 1
  .amdhsa_system_sgpr_workgroup_id_x 1
.end_amdhsa_kernel
.text
"""

STAMP = 64 << 20
def stamp_start(a, opt):
    if not opt.get("stamp"): return
    a("""
    s_memrealtime s[80:81]
    s_memtime s[82:83]
    s_waitcnt lgkmcnt(0)
    s_load_dwordx2 s[88:89], s[0:1], 64
    """)
def stamp_mid(a, opt, idx):
    if not opt.get("stamp"): return
    a(f"""
    s_memrealtime s[96:97]
    s_memtime s[98:99]
    s_waitcnt lgkmcnt(0)
    s_mov_b32 s{60+idx}, s96
    s_sub_u32 s{70+idx}, s98, s82
    """)
def stamp_end(a, opt, kidx, wavereg="s20", nmid=0):
    if not opt.get("stamp"): return
    a(f"""
    s_waitcnt vmcnt(0) lgkmcnt(0)
    s_memrealtime s[84:85]
    s_memtime s[86:87]
    s_waitcnt lgkmcnt(0)
    s_sub_u32 s86, s86, s82
    s_mov_b32 s92, s88
    s_mov_b32 s93, s89
    s_mov_b32 s94, {STAMP + (1 << 21)}
    s_mov_b32 s95, 0x20000
    s_lshl_b32 s90, s2, 4
    s_add_u32 s90, s90, {wavereg}
    s_lshl_b32 s90, s90, 6
    s_add_u32 s90, s90, {STAMP + kidx * 262144}
    s_getreg_b32 s91, hwreg(HW_REG_XCC_ID)
    s_getreg_b32 s87, hwreg(HW_REG_HW_ID)
    v_mov_b32 v8, s80
    v_mov_b32 v9, s84
    v_mov_b32 v10, s86
    s_and_b32 s91, s91, 15
    s_lshl_b32 s87, s87, 4
    s_or_b32 s91, s91, s87
    v_mov_b32 v11, s91
    """)
    for i in range(6):
        a(f"v_mov_b32 v{12+i}, s{60+i}" if i < nmid else f"v_mov_b32 v{12+i}, 0")
        a(f"v_mov_b32 v{18+i}, s{70+i}" if i < nmid else f"v_mov_b32 v{18+i}, 0")
    if opt.get("stamp") == 2:
        lab = f"Lstamp_skip_{kidx}_{nmid}"
        a(f"""
        s_load_dwordx2 s[92:93], s[0:1], 56
        s_waitcnt lgkmcnt(0)
        s_add_u32 s92, s92, {512*(2-kidx)}
        s_addc_u32 s93, s93, 0
        s_mov_b32 s94, 256
        s_or_b32 s90, s2, {wavereg}
        s_cmp_lg_u32 s90, 0
        s_cbranch_scc1 {lab}
        v_mov_b32 v1, 0
        s_mov_b64 exec, 1
        buffer_store_dword v8, v1, s[92:95], 0 offen offset:{kidx*20}
        buffer_store_dword v12, v1, s[92:95], 0 offen offset:{kidx*20+4}
        buffer_store_dword v{12+nmid-2}, v1, s[92:95], 0 offen offset:{kidx*20+8}
        buffer_store_dword v{12+nmid-1}, v1, s[92:95], 0 offen offset:{kidx*20+12}
        buffer_store_dword v9, v1, s[92:95], 0 offen offset:{kidx*20+16}
        s_waitcnt vmcnt(0)
        """)
        if kidx == 2 and opt.get("probe"):
            i, j, mult = opt["probe"]
            a(f"""
            buffer_load_dword v2, v1, s[92:95], 0 offen offset:{4*i} sc0 sc1
            buffer_load_dword v3, v1, s[92:95], 0 offen offset:{4*j} sc0 sc1
            s_waitcnt vmcnt(0)
            v_sub_u32 v2, v3, v2
            v_mul_u32_u24 v2, {mult}, v2
            v_min_u32 v2, 30000, v2
            s_nop 1
            v_readfirstlane_b32 s70, v2
            s_memrealtime s[72:73]
            s_waitcnt lgkmcnt(0)
            Lprobe:
            s_memrealtime s[74:75]
            s_waitcnt lgkmcnt(0)
            s_sub_u32 s76, s74, s72
            s_cmp_lt_u32 s76, s70
            s_cbranch_scc1 Lprobe
            """)
        a(f"{lab}:")
        return
    a(f"""
    v_mov_b32 v1, 0
    s_mov_b64 exec, 1
    buffer_store_dwordx4 v[8:11], v1, s[92:95], s90 offen
    buffer_store_dwordx4 v[12:15], v1, s[92:95], s90 offen offset:16
    buffer_store_dwordx4 v[16:19], v1, s[92:95], s90 offen offset:32
    buffer_store_dwordx4 v[20:23], v1, s[92:95], s90 offen offset:48
    s_waitcnt vmcnt(0)
    """)

def srd(a, d, lo, hi, nbytes):
    a(f"""
    s_mov_b32 s{d}, s{lo}
    s_mov_b32 s{d+1}, s{hi}
    s_mov_b32 s{d+2}, {nbytes}
    s_mov_b32 s{d+3}, 0x20000
    """)

def k_qkv(opt):
    name = "mha_qkv_kernel"
    a = Asm()
    SLOT = 40960
    a(f"""
    s_cmp_ge_u32 s2, 256
    s_cbranch_scc1 Lq_done
    """)
    stamp_start(a, opt)
    a(f"""
    s_load_dwordx4 s[4:7], s[0:1], 0
    s_load_dwordx4 s[8:11], s[0:1], 24
    s_load_dwordx2 s[12:13], s[0:1], 64
    v_lshrrev_b32 v1, 6, v0
    v_and_b32 v0, 63, v0
    s_and_b32 s14, s2, 7
    v_readfirstlane_b32 s20, v1
    s_lshr_b32 s15, s2, 3
    """)
    if opt.get("qkv_map", 0) == 0:
        a("""
        s_and_b32 s16, s14, 1
        s_lshl_b32 s16, s16, 3
        s_and_b32 s17, s15, 7
        s_add_u32 s21, s16, s17
        s_bfe_u32 s16, s14, 0x10001
        s_lshl_b32 s16, s16, 2
        s_lshr_b32 s17, s15, 3
        s_add_u32 s22, s16, s17
        """)
    else:
        a("""
        s_lshr_b32 s21, s15, 1
        s_and_b32 s16, s14, 3
        s_lshl_b32 s16, s16, 1
        s_and_b32 s17, s15, 1
        s_add_u32 s22, s16, s17
        """)
    a("""
    s_lshr_b32 s23, s14, 2
    s_cmp_eq_u32 s23, 0
    s_waitcnt lgkmcnt(0)
    s_cselect_b32 s4, s4, s8
    s_cselect_b32 s5, s5, s9
    s_cselect_b32 s6, s6, s10
    s_cselect_b32 s7, s7, s11
    """)
    stamp_mid(a, opt, 0)
    a("""
    s_cmp_ge_u32 s20, 4
    s_cbranch_scc1 Lq_loader
    """)
    ACC = 16
    XB = [112, 120]
    WB = [128, 140]
    VXB, VWB = 2, 6
    VX, VW = 8, 12
    def acc(seg, i): return ACC + (seg * 2 + i) * 16
    a(f"""
    s_lshr_b32 s24, s20, 1
    s_and_b32 s25, s20, 1
    v_and_b32 v13, 31, v0
    v_lshrrev_b32 v14, 5, v0
    v_bfe_u32 v15, v0, 1, 3
    s_lshl_b32 s26, s24, 13
    v_lshlrev_b32 v13, 7, v13
    v_add_u32 v13, s26, v13
    """)
    for ks in range(4):
        a(f"""
        v_add_u32 v7, {2*ks}, v14
        v_xor_b32 v7, v7, v15
        v_lshl_add_u32 v{VXB+ks}, v7, 4, v13
        """)
    a(f"""
    v_bfe_u32 v7, v0, 2, 2
    v_lshl_add_u32 v7, v14, 3, v7
    v_mul_u32_u24 v7, 384, v7
    v_bfe_u32 v13, v0, 3, 1
    v_xor_b32 v13, s25, v13
    v_lshl_add_u32 v7, v13, 6, v7
    v_bfe_u32 v13, v0, 4, 1
    v_lshl_add_u32 v7, v13, 5, v7
    v_and_b32 v13, 3, v0
    v_lshl_add_u32 v7, v13, 3, v7
    v_add_u32 v{VWB}, 16384, v7
    """)
    for r in range(ACC, ACC + 96): a(f"v_mov_b32 v{r}, 0")
    for ks in range(4): a(f"v_mov_b32 v{VX+ks}, v{VXB+ks}")
    a(f"v_mov_b32 v{VW}, v{VWB}")
    a(f"""
    s_lshl_b32 s27, s23, 5
    s_lshl_b32 s28, s22, 2
    s_add_u32 s27, s27, s28
    s_lshl_b32 s28, s25, 1
    s_add_u32 s27, s27, s28
    s_lshl_b32 s27, s27, 16
    s_lshl_b32 s28, s21, 2
    s_lshl_b32 s29, s24, 1
    s_add_u32 s28, s28, s29
    s_lshl_b32 s28, s28, 10
    s_add_u32 s28, s27, s28
    s_add_u32 s29, s28, {KF}
    s_add_u32 s30, s28, {VF}
    v_lshlrev_b32 v152, 4, v0
    v_bfe_u32 v7, v0, 2, 1
    v_bfe_u32 v13, v0, 3, 1
    v_and_b32 v153, 0x33, v0
    v_lshl_or_b32 v153, v7, 3, v153
    v_lshl_or_b32 v153, v13, 2, v153
    v_lshlrev_b32 v153, 4, v153
    v_and_b32 v154, 15, v0
    v_lshl_or_b32 v154, v14, 4, v154
    v_lshlrev_b32 v154, 4, v154
    v_bfe_u32 v7, v0, 4, 1
    v_lshl_or_b32 v154, v7, 16, v154
    v_add_u32 v155, 0x10000, v152
    v_add_u32 v156, 0x10000, v153
    """)
    srd(a, 16, 12, 13, OF)
    def reads(buf, ks):
        L = [f"ds_read_b128 {vr(XB[buf])}, v{VX+ks}"]
        for seg in range(3):
            for rd in range(2):
                L.append(f"ds_read_b64_tr_b16 {vr(WB[buf]+seg*4+rd*2, 2)}, v{VW} offset:{ks*6144+rd*1536+seg*128}")
        L.insert(3, f"ds_read_b128 {vr(XB[buf]+4)}, v{VX+ks} offset:4096")
        return L
    def mfmas(buf):
        L = []
        for i in range(2):
            for seg in range(3):
                w = vr(WB[buf] + seg * 4); x = vr(XB[buf] + i * 4); d = vr(acc(seg, i), 16)
                L.append(f"v_mfma_f32_32x32x16_bf16 {d}, {w}, {x}, {d}" if seg < 2 else f"v_mfma_f32_32x32x16_bf16 {d}, {x}, {w}, {d}")
        return L
    a("s_mov_b32 s31, 0\ns_mov_b32 s32, 0\ns_barrier")
    stamp_mid(a, opt, 1)
    for r in reads(0, 0): a(r)
    a("Lq_loop:")
    for ks in range(4):
        cur, nxt = ks % 2, (ks + 1) % 2
        M = mfmas(cur)
        a("s_waitcnt lgkmcnt(0)")
        if ks < 3:
            R = reads(nxt, ks + 1)
            seq = [M[0]] + R[0:3] + [M[1]] + R[3:6] + [M[2]] + R[6:8] + M[3:]
            for s in seq: a(s)
        else:
            R = reads(nxt, 0)
            a(M[0]); a(M[1])
            a(f"""
            s_cmp_eq_u32 s31, 7
            s_cbranch_scc1 Lq_last
            s_add_u32 s32, s32, {SLOT}
            s_cmp_eq_u32 s32, {4*SLOT}
            s_cselect_b32 s32, 0, s32
            s_add_u32 s31, s31, 1
            """)
            a(f"v_add_u32 v{VX}, s32, v{VXB}\nv_add_u32 v{VW}, s32, v{VWB}")
            a("s_barrier")
            seq = R[0:3] + [f"v_add_u32 v{VX+1}, s32, v{VXB+1}", M[2]] + R[3:6] + [f"v_add_u32 v{VX+2}, s32, v{VXB+2}", M[3]] + R[6:8] + [f"v_add_u32 v{VX+3}, s32, v{VXB+3}"] + M[4:]
            for s in seq: a(s)
            a("s_branch Lq_loop")
            a("Lq_last:")
            for m in M[2:]: a(m)
    stamp_mid(a, opt, 2)
    a(f"s_mov_b32 s33, {hex(f2u(CSCALE))}")
    a("s_nop 7")
    order = [(0, 0), (1, 0), (2, 0), (0, 1), (1, 1), (2, 1)]
    a("s_nop 7")
    for (seg, i) in order:
        d = acc(seg, i)
        if seg == 0:
            for r in range(16): a(f"v_mul_f32 v{d+r}, s33, v{d+r}")
        for r in range(8): a(f"v_cvt_pk_bf16_f32 v{d+r}, v{d+2*r}, v{d+2*r+1}")
        if seg == 0:
            a(f"buffer_store_dwordx4 {vr(d)}, v152, s[16:19], s28 offen offset:{i*1024}")
            a(f"buffer_store_dwordx4 {vr(d+4)}, v155, s[16:19], s28 offen offset:{i*1024}")
        elif seg == 1:
            a(f"buffer_store_dwordx4 {vr(d)}, v153, s[16:19], s29 offen offset:{i*1024}")
            a(f"buffer_store_dwordx4 {vr(d+4)}, v156, s[16:19], s29 offen offset:{i*1024}")
        else:
            a(f"buffer_store_dwordx4 {vr(d)}, v154, s[16:19], s30 offen offset:{i*1024}")
            a(f"buffer_store_dwordx4 {vr(d+4)}, v154, s[16:19], s30 offen offset:{i*1024+512}")
    stamp_end(a, opt, 0, nmid=3)
    a("s_endpgm")
    a("Lq_loader:")
    a(f"""
    s_sub_u32 s24, s20, 4
    s_lshl_b32 s25, s21, 17
    s_add_u32 s4, s4, s25
    s_addc_u32 s5, s5, 0
    s_lshl_b32 s25, s22, 7
    s_add_u32 s6, s6, s25
    s_addc_u32 s7, s7, 0
    s_sub_u32 s26, {512*3072}, s25
    """)
    srd(a, 8, 4, 5, 131072)
    a(f"""
    s_mov_b32 s12, s6
    s_mov_b32 s13, s7
    s_mov_b32 s14, s26
    s_mov_b32 s15, 0x20000
    v_lshrrev_b32 v1, 3, v0
    v_lshlrev_b32 v1, 10, v1
    s_lshl_b32 s25, s24, 15
    v_add_u32 v1, s25, v1
    v_and_b32 v2, 7, v0
    v_lshrrev_b32 v3, 4, v0
    v_xor_b32 v4, v2, v3
    v_lshl_add_u32 v10, v4, 4, v1
    v_xor_b32 v4, 4, v4
    v_lshl_add_u32 v11, v4, 4, v1
    s_lshl_b32 s25, s24, 4
    s_movk_i32 s27, 2731
    """)
    for t3 in range(3):
        a(f"""
        v_add_u32 v1, {64*t3}, v0
        v_mul_lo_u32 v2, v1, s27
        v_lshrrev_b32 v2, 16, v2
        v_mul_u32_u24 v3, 24, v2
        v_sub_u32 v3, v1, v3
        v_lshrrev_b32 v4, 2, v3
        v_bfe_u32 v5, v2, 1, 1
        v_xor_b32 v4, v4, v5
        v_add_u32 v2, s25, v2
        v_mul_u32_u24 v2, 3072, v2
        v_lshrrev_b32 v5, 1, v4
        v_lshl_add_u32 v2, v5, 10, v2
        v_and_b32 v5, 1, v4
        v_lshl_add_u32 v2, v5, 6, v2
        v_and_b32 v5, 3, v3
        v_lshl_add_u32 v{12+t3}, v5, 4, v2
        """)
    a(f"""
    s_mov_b32 s30, 0
    s_mov_b32 s31, 0
    s_mov_b32 s32, 0
    s_lshl_b32 s33, s24, 12
    s_mul_i32 s34, s24, 6144
    s_add_u32 s34, s34, 16384
    Lq_lloop:
    s_cmp_lt_u32 s30, 4
    s_cbranch_scc1 Lq_issue
    s_cmp_lg_u32 s30, 4
    s_cbranch_scc1 Lq_l1
    """)
    stamp_mid(a, opt, 1)
    a(f"""
    s_waitcnt vmcnt(30)
    s_barrier
    Lq_l1:
    s_waitcnt vmcnt(20)
    s_barrier
    Lq_issue:
    """)
    for i in range(4):
        a(f"""
        s_add_u32 m0, s33, {i*1024}
        s_add_u32 s35, s31, {i*8192}
        buffer_load_dwordx4 v{10+(i&1)}, s[8:11], s35 offen lds
        """)
    for g in range(2):
        for t3 in range(3):
            a(f"""
            s_add_u32 m0, s34, {g*3072+t3*1024}
            s_add_u32 s35, s32, {g*8*3072}
            buffer_load_dwordx4 v{12+t3}, s[12:15], s35 offen lds
            """)
    a(f"""
    s_add_u32 s30, s30, 1
    s_add_u32 s31, s31, 128
    s_add_u32 s32, s32, {64*3072}
    s_mov_b32 s35, {SLOT}
    s_cmp_eq_u32 s30, 4
    s_cselect_b32 s35, {-3*SLOT & 0xffffffff}, s35
    s_add_u32 s33, s33, s35
    s_add_u32 s34, s34, s35
    s_cmp_lt_u32 s30, 8
    s_cbranch_scc1 Lq_lloop
    s_waitcnt vmcnt(20)
    s_barrier
    s_waitcnt vmcnt(10)
    s_barrier
    s_waitcnt vmcnt(0)
    s_barrier
    """)
    stamp_end(a, opt, 0, nmid=2)
    a("Lq_done:\ns_endpgm")
    return name, a.text(), 160, "grid=(256,1,1) block=(512,1,1) lds=163840"

def k_attn(opt):
    name = "mha_attn_kernel"
    a = Asm()
    ZR = opt.get("zrows", 0)
    VBASE, VSTR = 65536, (1056 if ZR else 1040)
    Q = [8, 12]; K = [16, 20]; V = [[24, 28], [32, 36]]; S = [40, 56]; O = [72, 88]
    IDX, VK, VV0, VV1, VLANE = 7, 2, 3, 4, 5
    NEG = 104
    UNR = opt.get("unr", 8)
    a(f"""
    s_cmp_ge_u32 s2, 256
    s_cbranch_scc1 La_done
    """)
    stamp_start(a, opt)
    a(f"""
    s_load_dwordx2 s[4:5], s[0:1], 64
    v_lshrrev_b32 v1, 6, v0
    v_and_b32 v0, 63, v0
    s_and_b32 s21, s2, 63
    v_readfirstlane_b32 s20, v1
    s_lshr_b32 s22, s2, 6
    v_lshlrev_b32 v{VLANE}, 4, v0
    """)
    if opt.get("qkv_map", 0) == 1:
        a("""
        s_and_b32 s23, s2, 7
        s_lshl_b32 s23, s23, 3
        s_bfe_u32 s21, s2, 0x30003
        s_add_u32 s21, s21, s23
        """)
    a(f"""
    s_lshl_b32 s23, s21, 16
    s_and_b32 s24, s20, 1
    s_lshr_b32 s25, s20, 1
    s_lshl_b32 s26, s24, 22
    s_add_u32 s26, s26, s23
    s_add_u32 s26, s26, {KF}
    s_lshl_b32 s27, s22, 4
    s_lshl_b32 s28, s20, 1
    s_add_u32 s27, s27, s28
    s_lshl_b32 s28, s27, 10
    s_add_u32 s28, s28, s23
    s_lshl_b32 s29, s25, 10
    s_movk_i32 s30, 1024
    s_cmp_eq_u32 s24, 0
    s_cselect_b32 s30, s30, {VSTR}
    s_cselect_b32 s31, 0, {VBASE}
    s_mul_i32 s32, s25, s30
    s_add_u32 s31, s31, s32
    s_lshl_b32 s30, s30, 2
    s_waitcnt lgkmcnt(0)
    """)
    stamp_mid(a, opt, 0)
    a(f"""
    s_add_u32 s8, s4, s26
    s_addc_u32 s9, s5, 0
    s_mov_b32 s10, 65536
    s_mov_b32 s11, 0x20000
    """)
    srd(a, 12, 4, 5, WS_USED)
    a(f"""
    buffer_load_dwordx4 {vr(Q[0])}, v{VLANE}, s[12:15], s28 offen
    buffer_load_dwordx4 {vr(Q[1])}, v{VLANE}, s[12:15], s28 offen offset:1024
    """)
    for i in range(16):
        a(f"""
        s_mov_b32 m0, s31
        s_add_u32 s31, s31, s30
        buffer_load_dwordx4 v{VLANE}, s[8:11], s29 offen lds
        s_add_u32 s29, s29, 4096
        """)
    stamp_mid(a, opt, 1)
    a(f"""
    v_mov_b32 v{S[0]}, 0x3f803f80
    v_mov_b32 v{S[0]+1}, 0x3f803f80
    v_mov_b32 v{S[0]+2}, 0x3f803f80
    v_mov_b32 v{S[0]+3}, 0x3f803f80
    v_mul_u32_u24 v1, {VSTR}, v0
    v_add_u32 v1, {VBASE+1024}, v1
    s_cmp_lg_u32 s20, 0
    s_cbranch_scc1 La_noones
    ds_write_b128 v1, {vr(S[0])}
    """)
    if ZR:
        a(f"""
        v_mov_b32 v{S[0]+4}, 0
        v_mov_b32 v{S[0]+5}, 0
        v_mov_b32 v{S[0]+6}, 0
        v_mov_b32 v{S[0]+7}, 0
        ds_write_b128 v1, {vr(S[0]+4)} offset:16
        """)
    a(f"""
    La_noones:
    v_mov_b32 v{VK}, v{VLANE}
    v_and_b32 v1, 15, v0
    v_lshrrev_b32 v6, 5, v0
    v_lshl_or_b32 v1, v6, 4, v1
    v_lshlrev_b32 v1, 4, v1
    v_add_u32 v{VV0}, {VBASE}, v1
    v_add_u32 v{VV1}, {VBASE+512}, v1
    v_mov_b32 v1, {VBASE+1024}
    """)
    if ZR:
        a(f"""
        v_and_b32 v6, 27, v0
        v_cmp_ne_u32 vcc, 16, v6
        v_mov_b32 v6, {VBASE+1040}
        s_nop 0
        v_cndmask_b32 v1, v1, v6, vcc
        """)
    a(f"""
    v_and_b32 v6, 16, v0
    v_cmp_ne_u32 vcc, 0, v6
    v_mov_b32 v{IDX}, 0xdddddddd
    v_mov_b32 v{S[1]+8}, 0
    v_cndmask_b32 v{VV0}, v{VV0}, v1, vcc
    v_cndmask_b32 v{VV1}, v{VV1}, v1, vcc
    """)
    for r in range(S[1] + 9, S[1] + 16): a(f"v_mov_b32 v{r}, 0")
    for r in range(4): a(f"v_mov_b32 v{V[1][1]+r}, 0")
    for r in range(32): a(f"v_mov_b32 v{O[0]+r}, 0")
    a(f"""
    s_lshr_b32 s33, s21, 5
    s_lshl_b32 s33, s33, 6
    s_add_u32 s33, s33, s27
    s_lshl_b32 s33, s33, 5
    s_and_b32 s34, s21, 31
    s_add_u32 s33, s33, s34
    s_lshl_b32 s33, s33, 10
    s_add_u32 s33, s33, {OF}
    s_add_u32 s34, s33, 32768
    s_mov_b32 s35, 0
    s_waitcnt vmcnt({16 - (UNR + 3) // 4}) lgkmcnt(0)
    s_barrier
    """)
    stamp_mid(a, opt, 2)
    a(f"""
    ds_read_b128 {vr(K[0])}, v{VK}
    ds_read_b128 {vr(V[0][0])}, v{VV0}
    ds_read_b128 {vr(V[0][1])}, v{VV1}
    s_waitcnt lgkmcnt(0)
    v_mfma_f32_32x32x16_bf16 {vr(S[0],16)}, {vr(K[0])}, {vr(Q[0])}, 0
    s_nop 7
    s_nop 3
    .p2align 3
    La_loop:
    """)
    t = 2
    N = UNR * t
    for u in range(N):
        kt, q = divmod(u, t)
        pkt, pq = divmod((u - 1) % N, t)
        nkt, nq = divmod((u + 1) % N, t)
        s = S[u % 2]; sp = S[(u - 1) % 2]; sn = S[(u + 1) % 2]
        ex = [f"v_exp_f32 v{s+i}, v{s+i}" for i in range(16)]
        pv2 = f"v_smfmac_f32_32x32x32_bf16 {vr(O[pq],16)}, {vr(V[pkt%2][1])}, {vr(sp+8,8)}, v{IDX}"
        pv1 = f"v_smfmac_f32_32x32x32_bf16 {vr(O[q],16)}, {vr(V[kt%2][0])}, {vr(s,8)}, v{IDX}"
        qk = f"v_mfma_f32_32x32x16_bf16 {vr(sn,16)}, {vr(K[nkt%2])}, {vr(Q[nq])}, 0"
        em = opt.get("exp_mode", "exp")
        if em == "mov": ex = [f"v_mov_b32 v{s+i}, v{s+i}\ns_nop 0" for i in range(16)]
        if em == "none": ex = ["" for i in range(16)]
        if em == "expx": ex = [f"v_exp_f32 v{104+i}, v{s+i}" for i in range(16)]
        if not opt.get("pv", 1): pv1 = pv2 = ""
        if opt.get("pv", 1) == 2: pv2 = ""
        if not opt.get("qk", 1): qk = ""
        seq = ex[:2] + [pv2]
        if q == 0:
            nb = (kt + 1) % 2
            if kt == UNR - 1:
                seq += ["s_cmp_lg_u32 s35, 0", "s_cbranch_scc1 La_skipw", "s_waitcnt vmcnt(0)", "s_barrier", "La_skipw:"]
            seq += [f"ds_read_b128 {vr(K[nb])}, v{VK} offset:{(kt+1)*1024}",
                    f"ds_read_b128 {vr(V[nb][0])}, v{VV0} offset:{(kt+1)*VSTR}",
                    f"ds_read_b128 {vr(V[nb][1])}, v{VV1} offset:{(kt+1)*VSTR}"]
        seq += ex[2:5]
        if q == 1: seq += ["s_waitcnt lgkmcnt(0)"]
        seq += [qk] + ex[5:10] + [pv1]
        if kt == UNR - 1 and q == 1:
            seq += [f"v_add_u32 v{VK}, {UNR*1024}, v{VK}", f"v_add_u32 v{VV0}, {UNR*VSTR}, v{VV0}", f"v_add_u32 v{VV1}, {UNR*VSTR}, v{VV1}",
                    f"s_add_u32 s35, s35, 1", f"s_cmp_lt_u32 s35, {64//UNR}"]
        seq += ex[10:]
        for x in seq: a(x)
    a("s_cbranch_scc1 La_loop")
    stamp_mid(a, opt, 3)
    pkt, pq = divmod(N - 1, t)
    a(f"""
    s_nop 1
    v_smfmac_f32_32x32x32_bf16 {vr(O[pq],16)}, {vr(V[pkt%2][1])}, {vr(S[(N-1)%2]+8,8)}, v{IDX}
    s_mov_b32 s36, {hex(f2u(2.0**-32))}
    s_mov_b32 s37, {hex(f2u(2.0**32))}
    s_nop 7
    s_nop 3
    """)
    z = S[0]
    a(f"v_mul_f32 v{z}, 0, v{O[0]}")
    for r in list(range(1, 8)) + list(range(16, 24)): a(f"v_fmac_f32 v{z}, 0, v{O[0]+r}")
    a(f"""
    v_min_f32 v{z+1}, v{O[0]+8}, v{O[1]+8}
    v_max_f32 v{z+2}, v{O[0]+8}, v{O[1]+8}
    v_add_f32 v{z+3}, v{O[0]+8}, v{O[1]+8}
    v_fmac_f32 v{z}, 0, v{z+3}
    v_cmp_nge_f32 s[38:39], v{z+1}, s36
    v_cmp_nle_f32 s[40:41], v{z+2}, s37
    v_cmp_neq_f32 vcc, 0, v{z}
    s_nop 1
    s_or_b64 s[38:39], s[38:39], s[40:41]
    s_or_b64 vcc, vcc, s[38:39]
    s_cbranch_vccnz La_slow
    La_fin:
    """)
    for q in range(2):
        o = O[q]
        a(f"v_rcp_f32 v{z}, v{o+8}\ns_nop 0")
        for r in range(8): a(f"v_mul_f32 v{o+r}, v{z}, v{o+r}")
        for r in range(4): a(f"v_cvt_pk_bf16_f32 v{o+r}, v{o+2*r}, v{o+2*r+1}")
        a(f"buffer_store_dwordx4 {vr(o)}, v{VLANE}, s[12:15], s{33+q} offen")
    stamp_end(a, opt, 1, nmid=4)
    a("La_done:\ns_endpgm")
    a("La_slow:")
    a(f"""
    v_subrev_u32 v{VK}, {64*1024}, v{VK}
    v_subrev_u32 v{VV0}, {64*VSTR}, v{VV0}
    v_subrev_u32 v{VV1}, {64*VSTR}, v{VV1}
    """)
    for q in range(2):
        s = S[0]
        a(f"""
        v_mov_b32 v1, 0xff800000
        v_mov_b32 v6, v{VK}
        s_mov_b32 s35, 0
        La_max{q}:
        ds_read_b128 {vr(K[0])}, v6
        v_add_u32 v6, 1024, v6
        s_waitcnt lgkmcnt(0)
        v_mfma_f32_32x32x16_bf16 {vr(s,16)}, {vr(K[0])}, {vr(Q[q])}, 0
        s_nop 7
        s_nop 7
        """)
        for r in range(8): a(f"v_max3_f32 v1, v1, v{s+2*r}, v{s+2*r+1}")
        a(f"""
        s_add_u32 s35, s35, 1
        s_cmp_lt_u32 s35, 64
        s_cbranch_scc1 La_max{q}
        v_mov_b32 v6, v1
        s_nop 1
        v_permlane32_swap_b32 v1, v6
        s_nop 1
        v_max_f32 v1, v1, v6
        """)
        for r in range(16): a(f"v_sub_f32 v{NEG+r}, 0, v1")
        for r in range(16): a(f"v_mov_b32 v{O[q]+r}, 0")
        a(f"""
        v_mov_b32 v6, v{VK}
        v_mov_b32 v120, v{VV0}
        v_mov_b32 v121, v{VV1}
        s_mov_b32 s35, 0
        La_acc{q}:
        ds_read_b128 {vr(K[0])}, v6
        ds_read_b128 {vr(V[0][0])}, v120
        ds_read_b128 {vr(V[0][1])}, v121
        v_add_u32 v6, 1024, v6
        v_add_u32 v120, {VSTR}, v120
        v_add_u32 v121, {VSTR}, v121
        s_waitcnt lgkmcnt(0)
        v_mfma_f32_32x32x16_bf16 {vr(s,16)}, {vr(K[0])}, {vr(Q[q])}, {vr(NEG,16)}
        s_nop 7
        s_nop 7
        """)
        for r in range(16): a(f"v_exp_f32 v{s+r}, v{s+r}")
        a(f"""
        s_nop 2
        v_smfmac_f32_32x32x32_bf16 {vr(O[q],16)}, {vr(V[0][0])}, {vr(s,8)}, v{IDX}
        v_smfmac_f32_32x32x32_bf16 {vr(O[q],16)}, {vr(V[0][1])}, {vr(s+8,8)}, v{IDX}
        s_add_u32 s35, s35, 1
        s_cmp_lt_u32 s35, 64
        s_cbranch_scc1 La_acc{q}
        s_nop 7
        s_nop 7
        """)
    a("s_branch La_fin")
    return name, a.text(), 128, "grid=(256,1,1) block=(512,1,1) lds=134656"

def k_oproj(opt):
    name = "mha_oproj_kernel"
    a = Asm()
    OB = 32
    ACC = [160, 176]
    WB = [8, 16]
    a(f"""
    s_cmp_ge_u32 s2, 256
    s_cbranch_scc1 Lo_done
    """)
    stamp_start(a, opt)
    a(f"""
    s_load_dwordx2 s[4:5], s[0:1], 16
    s_load_dwordx4 s[8:11], s[0:1], 40
    s_load_dwordx2 s[6:7], s[0:1], 64
    v_lshrrev_b32 v1, 6, v0
    v_and_b32 v0, 63, v0
    s_and_b32 s14, s2, 7
    v_readfirstlane_b32 s20, v1
    s_lshr_b32 s15, s2, 3
    s_lshl_b32 s21, s14, 2
    s_lshr_b32 s22, s15, 3
    s_add_u32 s21, s21, s22
    s_and_b32 s22, s15, 7
    s_lshr_b32 s23, s21, 4
    s_lshl_b32 s24, s21, 2
    s_add_u32 s24, s24, s20
    s_lshl_b32 s25, s24, 15
    s_add_u32 s25, s25, {OF}
    v_lshlrev_b32 v2, 4, v0
    v_lshrrev_b32 v3, 3, v0
    v_lshlrev_b32 v3, 10, v3
    v_bfe_u32 v4, v0, 4, 1
    v_lshlrev_b32 v4, 2, v4
    v_and_b32 v5, 7, v0
    v_xor_b32 v4, v4, v5
    v_lshl_add_u32 v3, v4, 4, v3
    s_lshl_b32 s26, s22, 7
    s_lshl_b32 s27, s20, 13
    s_lshl_b32 s28, s20, 10
    s_cmp_eq_u32 s23, 0
    s_waitcnt lgkmcnt(0)
    s_cselect_b32 s4, s4, s8
    s_cselect_b32 s5, s5, s9
    """)
    stamp_mid(a, opt, 0)
    a(f"""
    s_add_u32 s12, s4, s26
    s_addc_u32 s13, s5, 0
    s_sub_u32 s14, {512*1024}, s26
    s_mov_b32 s15, 0x20000
    s_add_u32 s16, s6, s25
    s_addc_u32 s17, s7, 0
    s_mov_b32 s18, 32768
    s_mov_b32 s19, 0x20000
    s_mov_b32 s29, 0
    """)
    for i in range(16):
        a(f"""
        s_mov_b32 m0, s28
        s_add_u32 s28, s28, 4096
        buffer_load_dwordx4 v3, s[12:15], s27 offen lds
        s_add_u32 s27, s27, 32768
        buffer_load_dwordx4 {vr(OB+8*i)}, v2, s[16:19], s29 offen
        buffer_load_dwordx4 {vr(OB+8*i+4)}, v2, s[16:19], s29 offen offset:1024
        s_add_u32 s29, s29, 2048
        """)
    stamp_mid(a, opt, 1)
    a(f"""
    v_lshrrev_b32 v4, 5, v0
    v_bfe_u32 v5, v0, 2, 2
    v_lshl_add_u32 v5, v4, 2, v5
    v_lshlrev_b32 v6, 7, v5
    v_bfe_u32 v5, v0, 3, 1
    v_lshl_add_u32 v6, v5, 6, v6
    v_bfe_u32 v5, v0, 4, 1
    v_lshl_add_u32 v6, v5, 5, v6
    v_and_b32 v5, 1, v0
    v_lshl_add_u32 v6, v5, 4, v6
    v_bfe_u32 v5, v0, 1, 1
    v_lshl_add_u32 v6, v5, 3, v6
    v_xor_b32 v7, 64, v6
    v_and_b32 v5, 31, v0
    v_lshlrev_b32 v24, 11, v5
    v_lshl_add_u32 v24, v4, 4, v24
    s_and_b32 s30, s24, 63
    s_lshl_b32 s30, s30, 16
    s_lshl_b32 s31, s23, 10
    s_add_u32 s30, s30, s31
    s_add_u32 s30, s30, s26
    """)
    srd(a, 4, 10, 11, 4 << 20)
    for r in range(32): a(f"v_mov_b32 v{ACC[0]+r}, 0")
    def reads(buf, h):
        return [f"ds_read_b64_tr_b16 {vr(WB[buf]+ns*4+rd*2,2)}, v{6+ns} offset:{h*2048+rd*1024}" for ns in range(2) for rd in range(2)]
    for h in range(32):
        if h % 8 == 0:
            a(f"s_waitcnt vmcnt({36 - 12*(h//8)})\ns_barrier")
            if h == 0: stamp_mid(a, opt, 2)
            for r in reads(h % 2, h): a(r)
        last = (h % 8 == 7)
        if not last:
            for r in reads((h + 1) % 2, h + 1): a(r)
        a(f"s_waitcnt lgkmcnt({0 if last else 4})")
        for ns in range(2):
            a(f"v_mfma_f32_32x32x16_bf16 {vr(ACC[ns],16)}, {vr(WB[h%2]+ns*4)}, {vr(OB+4*h)}, {vr(ACC[ns],16)}")
    stamp_mid(a, opt, 3)
    a("s_nop 7\ns_nop 3")
    for ns in range(2):
        d = ACC[ns]
        for r in range(8): a(f"v_cvt_pk_bf16_f32 v{d+r}, v{d+2*r}, v{d+2*r+1}")
        a(f"buffer_store_dwordx4 {vr(d)}, v24, s[4:7], s30 offen offset:{ns*64}")
        a(f"buffer_store_dwordx4 {vr(d+4)}, v24, s[4:7], s30 offen offset:{ns*64+32}")
    stamp_end(a, opt, 2, nmid=4)
    a("Lo_done:\ns_endpgm")
    return name, a.text(), 192, "grid=(256,1,1) block=(256,1,1) lds=65536"

def build(opt=None):
    opt = opt or {}
    ref = open("cdna_kernels/" + NAME + ".s.ref").read().split("\n")
    head = []
    for line in ref:
        if line.startswith("; Override"): break
        head.append(line)
    ks = [k_qkv(opt), k_attn(opt), k_oproj(opt)]
    sel = opt.get("only")
    ks.append(("mha_nop_kernel", "  s_endpgm\n", 8, "grid=(1,1,1) block=(64,1,1) lds=0"))
    txt = "\n".join(head) + "\n"
    sel = sel or [0, 1, 2]
    for i in sel: txt += f"; @launch kernel={ks[i][0]} {ks[i][3]}\n"
    ks = [k for i, k in enumerate(ks) if i in sel]
    txt += '.amdgcn_target "amdgcn-amd-amdhsa--gfx950"\n.text\n'
    for n, body, nv, _ in ks:
        txt += header(n) + body + descriptor(n, nv)
    return txt

if __name__ == "__main__":
    out = sys.argv[1] if len(sys.argv) > 1 else "cdna_kernels/" + NAME + ".s"
    opt = eval(sys.argv[2]) if len(sys.argv) > 2 else {}
    open(out, "w").write(build(opt))
```

```python
import sys, math, struct

NAME = "concat_heads__mha_block__softmax_full_mha__prompt"
QF, KF, VF, OF = 0, 4 << 20, 8 << 20, 12 << 20
WS_USED = 16 << 20
CSCALE = 0.25 * 1.4426950408889634

def f2u(x): return struct.unpack("<I", struct.pack("<f", x))[0]

class Asm:
    def __init__(self): self.l = []
    def __call__(self, s):
        for line in s.strip("\n").split("\n"):
            line = line.strip()
            if not line: continue
            self.l.append(line if line.endswith(":") or line.startswith(".") else "  " + line)
    def text(self): return "\n".join(self.l) + "\n"

def vr(b, n=4): return f"v[{b}:{b+n-1}]"
def sr(b, n=2): return f"s[{b}:{b+n-1}]"

def header(name):
    return f""".globl {name}
.p2align 12
.type {name},@function
{name}:
"""
def descriptor(name, nvgpr, nsgpr=102):
    acc = (nvgpr + 3) // 4 * 4
    return f""".section .rodata,"a"
.p2align 6
.amdhsa_kernel {name}
  .amdhsa_next_free_vgpr {nvgpr}
  .amdhsa_next_free_sgpr {nsgpr}
  .amdhsa_accum_offset {acc}
  .amdhsa_group_segment_fixed_size 0
  .amdhsa_kernarg_size 72
  .amdhsa_user_sgpr_count 2
  .amdhsa_user_sgpr_kernarg_segment_ptr 1
  .amdhsa_system_sgpr_workgroup_id_x 1
.end_amdhsa_kernel
.text
"""

STAMP = 64 << 20
def stamp_start(a, opt):
    if not opt.get("stamp"): return
    a("""
    s_memrealtime s[80:81]
    s_memtime s[82:83]
    s_waitcnt lgkmcnt(0)
    s_load_dwordx2 s[88:89], s[0:1], 64
    """)
def stamp_mid(a, opt, idx):
    if not opt.get("stamp"): return
    a(f"""
    s_memrealtime s[96:97]
    s_memtime s[98:99]
    s_waitcnt lgkmcnt(0)
    s_mov_b32 s{60+idx}, s96
    s_sub_u32 s{70+idx}, s98, s82
    """)
def stamp_end(a, opt, kidx, wavereg="s20", nmid=0):
    if not opt.get("stamp"): return
    a(f"""
    s_waitcnt vmcnt(0) lgkmcnt(0)
    s_memrealtime s[84:85]
    s_memtime s[86:87]
    s_waitcnt lgkmcnt(0)
    s_sub_u32 s86, s86, s82
    s_mov_b32 s92, s88
    s_mov_b32 s93, s89
    s_mov_b32 s94, {STAMP + (1 << 21)}
    s_mov_b32 s95, 0x20000
    s_lshl_b32 s90, s2, 4
    s_add_u32 s90, s90, {wavereg}
    s_lshl_b32 s90, s90, 6
    s_add_u32 s90, s90, {STAMP + kidx * 262144}
    s_getreg_b32 s91, hwreg(HW_REG_XCC_ID)
    s_getreg_b32 s87, hwreg(HW_REG_HW_ID)
    v_mov_b32 v8, s80
    v_mov_b32 v9, s84
    v_mov_b32 v10, s86
    s_and_b32 s91, s91, 15
    s_lshl_b32 s87, s87, 4
    s_or_b32 s91, s91, s87
    v_mov_b32 v11, s91
    """)
    for i in range(6):
        a(f"v_mov_b32 v{12+i}, s{60+i}" if i < nmid else f"v_mov_b32 v{12+i}, 0")
        a(f"v_mov_b32 v{18+i}, s{70+i}" if i < nmid else f"v_mov_b32 v{18+i}, 0")
    if opt.get("stamp") == 2:
        lab = f"Lstamp_skip_{kidx}_{nmid}"
        a(f"""
        s_load_dwordx2 s[92:93], s[0:1], 56
        s_waitcnt lgkmcnt(0)
        s_add_u32 s92, s92, {512*(2-kidx)}
        s_addc_u32 s93, s93, 0
        s_mov_b32 s94, 256
        s_or_b32 s90, s2, {wavereg}
        s_cmp_lg_u32 s90, 0
        s_cbranch_scc1 {lab}
        v_mov_b32 v1, 0
        s_mov_b64 exec, 1
        buffer_store_dword v8, v1, s[92:95], 0 offen offset:{kidx*20}
        buffer_store_dword v12, v1, s[92:95], 0 offen offset:{kidx*20+4}
        buffer_store_dword v{12+nmid-2}, v1, s[92:95], 0 offen offset:{kidx*20+8}
        buffer_store_dword v{12+nmid-1}, v1, s[92:95], 0 offen offset:{kidx*20+12}
        buffer_store_dword v9, v1, s[92:95], 0 offen offset:{kidx*20+16}
        s_waitcnt vmcnt(0)
        """)
        if kidx == 2 and opt.get("probe"):
            i, j, mult = opt["probe"]
            a(f"""
            buffer_load_dword v2, v1, s[92:95], 0 offen offset:{4*i} sc0 sc1
            buffer_load_dword v3, v1, s[92:95], 0 offen offset:{4*j} sc0 sc1
            s_waitcnt vmcnt(0)
            v_sub_u32 v2, v3, v2
            v_mul_u32_u24 v2, {mult}, v2
            v_min_u32 v2, 30000, v2
            s_nop 1
            v_readfirstlane_b32 s70, v2
            s_memrealtime s[72:73]
            s_waitcnt lgkmcnt(0)
            Lprobe:
            s_memrealtime s[74:75]
            s_waitcnt lgkmcnt(0)
            s_sub_u32 s76, s74, s72
            s_cmp_lt_u32 s76, s70
            s_cbranch_scc1 Lprobe
            """)
        a(f"{lab}:")
        return
    a(f"""
    v_mov_b32 v1, 0
    s_mov_b64 exec, 1
    buffer_store_dwordx4 v[8:11], v1, s[92:95], s90 offen
    buffer_store_dwordx4 v[12:15], v1, s[92:95], s90 offen offset:16
    buffer_store_dwordx4 v[16:19], v1, s[92:95], s90 offen offset:32
    buffer_store_dwordx4 v[20:23], v1, s[92:95], s90 offen offset:48
    s_waitcnt vmcnt(0)
    """)

def srd(a, d, lo, hi, nbytes):
    a(f"""
    s_mov_b32 s{d}, s{lo}
    s_mov_b32 s{d+1}, s{hi}
    s_mov_b32 s{d+2}, {nbytes}
    s_mov_b32 s{d+3}, 0x20000
    """)

def k_qkv(opt):
    name = "mha_qkv_kernel"
    a = Asm()
    SLOT, WOFF, KREG = 24576, 16384, 98304
    st = opt.get("st0", " sc1")
    a(f"""
    s_cmp_ge_u32 s2, 256
    s_cbranch_scc1 Lq_done
    """)
    stamp_start(a, opt)
    a(f"""
    s_load_dwordx4 s[4:7], s[0:1], 0
    s_load_dwordx4 s[8:11], s[0:1], 24
    s_load_dwordx2 s[12:13], s[0:1], 64
    v_lshrrev_b32 v1, 6, v0
    v_and_b32 v0, 63, v0
    s_and_b32 s14, s2, 7
    v_readfirstlane_b32 s20, v1
    s_lshr_b32 s15, s2, 3
    """)
    if opt.get("qkv_map", 0) == 0:
        a("""
        s_and_b32 s16, s14, 1
        s_lshl_b32 s16, s16, 3
        s_and_b32 s17, s15, 7
        s_add_u32 s21, s16, s17
        s_bfe_u32 s16, s14, 0x10001
        s_lshl_b32 s16, s16, 2
        s_lshr_b32 s17, s15, 3
        s_add_u32 s22, s16, s17
        """)
    else:
        a("""
        s_lshr_b32 s21, s15, 1
        s_and_b32 s16, s14, 3
        s_lshl_b32 s16, s16, 1
        s_and_b32 s17, s15, 1
        s_add_u32 s22, s16, s17
        """)
    a("""
    s_lshr_b32 s23, s14, 2
    s_cmp_ge_u32 s20, 4
    s_cbranch_scc1 Lq_loader
    """)
    X = 16
    ACC = [144, 160]
    WB = [176, 184, 192, 200]
    PK = 208
    VX = 2
    VW0, VW1, VN0, VN1 = 6, 7, 8, 9
    VSQ, VSK, VSV = 10, 11, 12
    a(f"""
    v_and_b32 v14, 31, v0
    v_lshrrev_b32 v15, 5, v0
    v_bfe_u32 v{PK}, v0, 1, 3
    s_lshl_b32 s26, s20, 12
    v_lshlrev_b32 v14, 7, v14
    v_add_u32 v14, s26, v14
    """)
    for ks in range(4):
        a(f"""
        v_add_u32 v{PK+1}, {2*ks}, v15
        v_xor_b32 v{PK+1}, v{PK+1}, v{PK}
        v_lshl_add_u32 v{VX+ks}, v{PK+1}, 4, v14
        """)
    a(f"""
    v_bfe_u32 v14, v0, 2, 2
    v_lshl_add_u32 v14, v15, 3, v14
    v_lshlrev_b32 v14, 7, v14
    v_bfe_u32 v{PK}, v0, 3, 1
    v_lshl_add_u32 v14, v{PK}, 6, v14
    v_bfe_u32 v{PK}, v0, 4, 1
    v_lshl_add_u32 v14, v{PK}, 5, v14
    v_and_b32 v{PK}, 3, v0
    v_lshl_add_u32 v{VW0}, v{PK}, 3, v14
    v_xor_b32 v{VW1}, 64, v{VW0}
    v_add_u32 v{VN0}, {KREG}, v{VW0}
    v_add_u32 v{VN1}, {KREG}, v{VW1}
    v_add_u32 v{PK+2}, {2*SLOT}, v{VW0}
    v_add_u32 v{PK+3}, {2*SLOT}, v{VW1}
    """)
    for ks in range(4): a(f"v_add_u32 v{PK+4+ks}, {2*SLOT}, v{VX+ks}")
    a(f"""
    s_lshl_b32 s27, s23, 5
    s_lshl_b32 s28, s22, 2
    s_add_u32 s27, s27, s28
    s_lshl_b32 s27, s27, 16
    s_lshl_b32 s28, s21, 2
    s_add_u32 s28, s28, s20
    s_lshl_b32 s28, s28, 10
    s_add_u32 s28, s27, s28
    s_add_u32 s34, s28, {KF}
    s_add_u32 s30, s28, {VF}
    s_add_u32 s29, s30, 0x20000
    v_lshlrev_b32 v{VSQ}, 4, v0
    v_bfe_u32 v14, v0, 2, 1
    v_bfe_u32 v{PK}, v0, 3, 1
    v_and_b32 v{VSK}, 0x33, v0
    v_lshl_or_b32 v{VSK}, v14, 3, v{VSK}
    v_lshl_or_b32 v{VSK}, v{PK}, 2, v{VSK}
    v_lshlrev_b32 v{VSK}, 4, v{VSK}
    v_and_b32 v{VSV}, 15, v0
    v_lshl_or_b32 v{VSV}, v15, 4, v{VSV}
    v_lshlrev_b32 v{VSV}, 4, v{VSV}
    v_bfe_u32 v14, v0, 4, 1
    v_lshl_or_b32 v{VSV}, v14, 16, v{VSV}
    s_waitcnt lgkmcnt(0)
    """)
    stamp_mid(a, opt, 0)
    srd(a, 16, 12, 13, OF)
    def p1_reads(n):
        c, ks = divmod(n, 4)
        slot = c % 4
        hi = slot >= 2
        off = (slot % 2) * SLOT
        vx = (PK + 4 + ks) if hi else (VX + ks)
        vw = [PK + 2, PK + 3] if hi else [VW0, VW1]
        L = [f"ds_read_b128 {vr(X+4*n)}, v{vx} offset:{off}"]
        for sub in range(2):
            for rd in range(2):
                L.append(f"ds_read_b64_tr_b16 {vr(WB[n%4]+sub*4+rd*2,2)}, v{vw[sub]} offset:{off+WOFF+ks*2048+rd*512}")
        return L
    def p2_reads(n, v0, v1):
        return [f"ds_read_b64_tr_b16 {vr(WB[n%4]+sub*4+rd*2,2)}, v{(v0, v1)[sub]} offset:{n*2048+rd*512}" for sub in range(2) for rd in range(2)]
    def mf(n, swap):
        L = []
        for sub in range(2):
            w = vr(WB[n % 4] + sub * 4); x = vr(X + 4 * n); d = vr(ACC[sub], 16)
            c = d if n > 0 else "0"
            L.append(f"v_mfma_f32_32x32x16_bf16 {d}, {x}, {w}, {c}" if swap else f"v_mfma_f32_32x32x16_bf16 {d}, {w}, {x}, {c}")
        return L
    def pack():
        for sub in range(2):
            for r in range(8): a(f"v_cvt_pk_bf16_f32 v{PK+sub*8+r}, v{ACC[sub]+2*r}, v{ACC[sub]+2*r+1}")
    a("s_barrier")
    stamp_mid(a, opt, 1)
    for r in p1_reads(0) + p1_reads(1): a(r)
    for n in range(32):
        nn = n + 2
        R = p1_reads(nn) if nn < 32 else p2_reads(nn - 32, VN0, VN1)
        a(f"s_waitcnt lgkmcnt({5 if n + 1 < 32 else 4})")
        M = mf(n, True)
        bar = ["s_barrier"] if nn % 4 == 0 else []
        for x in [M[0]] + bar + R[:3] + [M[1]] + R[3:]: a(x)
    stamp_mid(a, opt, 2)
    a(f"""
    v_swap_b32 v{VW0}, v{VN0}
    v_swap_b32 v{VW1}, v{VN1}
    s_mov_b32 s31, 0
    s_mov_b32 s33, {hex(f2u(CSCALE))}
    s_nop 7
    """)
    pack()
    a(f"""
    buffer_store_dwordx4 {vr(PK)}, v{VSV}, s[16:19], s30 offen{st}
    buffer_store_dwordx4 {vr(PK+4)}, v{VSV}, s[16:19], s30 offen offset:512{st}
    buffer_store_dwordx4 {vr(PK+8)}, v{VSV}, s[16:19], s29 offen{st}
    buffer_store_dwordx4 {vr(PK+12)}, v{VSV}, s[16:19], s29 offen offset:512{st}
    """)
    a("Lq_pass:")
    for n in range(32):
        nn = n + 2
        R = p2_reads(nn, VW0, VW1) if nn < 32 else p2_reads(nn - 32, VN0, VN1)
        a("s_waitcnt lgkmcnt(4)")
        M = mf(n, False)
        bar = ["s_cmp_lg_u32 s31, 0", "s_cbranch_scc1 Lq_nob", "s_barrier", "Lq_nob:"] if nn == 32 else []
        for x in [M[0]] + bar + R[:2] + [M[1]] + R[2:]: a(x)
    a(f"""
    s_add_u32 s35, s34, 0x10000
    s_add_u32 s36, s34, 0x20000
    s_add_u32 s37, s34, 0x30000
    v_mov_b32 v{VW0}, v{VN0}
    v_mov_b32 v{VW1}, v{VN1}
    s_nop 4
    s_cmp_eq_u32 s31, 0
    s_cbranch_scc1 Lq_noscale
    """)
    stamp_mid(a, opt, 3)
    for r in range(32): a(f"v_mul_f32 v{ACC[0]+r}, s33, v{ACC[0]+r}")
    a("Lq_noscale:")
    pack()
    for i in range(4): a(f"buffer_store_dwordx4 {vr(PK+4*i)}, v{VSK}, s[16:19], s{34+i} offen{st}")
    a(f"""
    s_mov_b32 s34, s28
    v_mov_b32 v{VSK}, v{VSQ}
    s_add_u32 s31, s31, 1
    s_cmp_eq_u32 s31, 1
    s_cbranch_scc1 Lq_pass
    """)
    stamp_end(a, opt, 0, nmid=4)
    a("s_endpgm")
    a("Lq_loader:")
    a(f"""
    s_sub_u32 s24, s20, 4
    v_lshrrev_b32 v1, 3, v0
    v_lshlrev_b32 v1, 10, v1
    s_lshl_b32 s25, s24, 15
    v_add_u32 v1, s25, v1
    v_and_b32 v2, 7, v0
    v_lshrrev_b32 v3, 4, v0
    v_xor_b32 v4, v2, v3
    v_lshl_add_u32 v10, v4, 4, v1
    v_xor_b32 v4, 4, v4
    v_lshl_add_u32 v11, v4, 4, v1
    v_lshrrev_b32 v1, 3, v0
    v_mul_u32_u24 v1, 3072, v1
    v_bfe_u32 v3, v0, 4, 1
    v_lshlrev_b32 v3, 2, v3
    v_xor_b32 v3, v2, v3
    v_lshl_add_u32 v12, v3, 4, v1
    s_lshl_b32 s33, s24, 12
    s_lshl_b32 s34, s24, 11
    s_mul_i32 s36, s24, {16*3072}
    s_lshl_b32 s37, s24, 10
    s_mul_i32 s38, s24, {8*3072}
    s_lshl_b32 s25, s21, 17
    s_lshl_b32 s26, s22, 7
    s_cmp_eq_u32 s23, 0
    s_waitcnt lgkmcnt(0)
    s_cselect_b32 s4, s4, s8
    s_cselect_b32 s5, s5, s9
    s_cselect_b32 s6, s6, s10
    s_cselect_b32 s7, s7, s11
    s_add_u32 s8, s4, s25
    s_addc_u32 s9, s5, 0
    s_mov_b32 s10, 131072
    s_mov_b32 s11, 0x20000
    s_add_u32 s12, s6, s26
    s_addc_u32 s13, s7, 0
    s_sub_u32 s14, {512*3072}, s26
    s_mov_b32 s15, 0x20000
    """)
    stamp_mid(a, opt, 0)
    def chunk(c):
        base = (c % 4) * SLOT
        for i in range(4):
            a(f"""
            s_add_u32 m0, s33, {base+i*1024}
            s_mov_b32 s35, {i*8192+c*128}
            buffer_load_dwordx4 v{10+(i&1)}, s[8:11], s35 offen lds
            """)
        for g in range(2):
            a(f"""
            s_add_u32 m0, s34, {base+WOFF+g*1024}
            s_add_u32 s35, s36, {(64*c+8*g)*3072+2048}
            buffer_load_dwordx4 v12, s[12:15], s35 offen lds
            """)
    def wres(i0, i1, ldsbase, col):
        for i in range(i0, i1):
            a(f"""
            s_add_u32 m0, s37, {ldsbase+i*4096}
            s_add_u32 s35, s38, {i*32*3072+col}
            buffer_load_dwordx4 v12, s[12:15], s35 offen lds
            """)
    def wb(n): a(f"s_waitcnt vmcnt({n})\ns_barrier")
    chunk(0); chunk(1); wb(6)
    stamp_mid(a, opt, 1)
    chunk(2); chunk(3); wb(12)
    wres(0, 4, KREG, 1024); wb(10)
    chunk(4); wres(4, 8, KREG, 1024); wb(14)
    chunk(5); wres(8, 12, KREG, 1024); wb(14)
    chunk(6); wres(12, 16, KREG, 1024); wb(14)
    chunk(7); wb(10)
    wb(0)
    stamp_mid(a, opt, 2)
    a("s_barrier")
    wres(0, 16, 0, 0); wb(0)
    stamp_end(a, opt, 0, nmid=3)
    a("Lq_done:\ns_endpgm")
    return name, a.text(), 224, "grid=(256,1,1) block=(512,1,1) lds=163840"

def k_attn(opt):
    name = "mha_attn_kernel"
    a = Asm()
    VBASE, VSTR = 65536, 1056
    T = 4
    Q = [8, 12, 16, 20]; K = [24, 28]; V = [[32, 36], [40, 44]]; S = [48, 64]; O = [80, 96, 112, 128]
    IDX, VK, VV0, VV1, VLANE = 7, 2, 3, 4, 5
    NEG = 144
    UNR = opt.get("unr", 4)
    FIRST = opt.get("first", 8)
    st = opt.get("st1", "")
    a(f"""
    s_cmp_ge_u32 s2, 256
    s_cbranch_scc1 La_done
    """)
    stamp_start(a, opt)
    a(f"""
    s_load_dwordx2 s[4:5], s[0:1], 64
    v_lshrrev_b32 v1, 6, v0
    v_and_b32 v0, 63, v0
    s_and_b32 s21, s2, 63
    v_readfirstlane_b32 s20, v1
    s_lshr_b32 s22, s2, 6
    v_lshlrev_b32 v{VLANE}, 4, v0
    """)
    if opt.get("qkv_map", 0) == 1:
        a("""
        s_and_b32 s23, s2, 7
        s_lshl_b32 s23, s23, 3
        s_bfe_u32 s21, s2, 0x30003
        s_add_u32 s21, s21, s23
        """)
    a(f"""
    s_lshl_b32 s23, s21, 16
    s_cmp_ge_u32 s20, 4
    s_cbranch_scc1 La_loader
    s_lshl_b32 s27, s22, 4
    s_lshl_b32 s28, s20, 2
    s_add_u32 s27, s27, s28
    s_lshl_b32 s28, s27, 10
    s_add_u32 s28, s28, s23
    s_waitcnt lgkmcnt(0)
    """)
    stamp_mid(a, opt, 0)
    srd(a, 12, 4, 5, WS_USED)
    for q in range(T): a(f"buffer_load_dwordx4 {vr(Q[q])}, v{VLANE}, s[12:15], s28 offen offset:{q*1024}")
    a(f"""
    v_mov_b32 v{VK}, v{VLANE}
    v_and_b32 v1, 15, v0
    v_lshrrev_b32 v6, 5, v0
    v_lshl_or_b32 v1, v6, 4, v1
    v_lshlrev_b32 v1, 4, v1
    v_add_u32 v{VV0}, {VBASE}, v1
    v_add_u32 v{VV1}, {VBASE+512}, v1
    v_mov_b32 v1, {VBASE+1024}
    v_and_b32 v6, 27, v0
    v_cmp_ne_u32 vcc, 16, v6
    v_mov_b32 v6, {VBASE+1040}
    v_mov_b32 v{IDX}, 0xdddddddd
    v_cndmask_b32 v1, v1, v6, vcc
    v_and_b32 v6, 16, v0
    v_cmp_ne_u32 vcc, 0, v6
    v_mov_b32 v{S[1]+8}, 0
    v_mov_b32 v{S[1]+9}, 0
    v_cndmask_b32 v{VV0}, v{VV0}, v1, vcc
    v_cndmask_b32 v{VV1}, v{VV1}, v1, vcc
    """)
    for r in range(S[1] + 10, S[1] + 16): a(f"v_mov_b32 v{r}, 0")
    for r in range(4): a(f"v_mov_b32 v{V[1][1]+r}, 0")
    for r in range(16 * T): a(f"v_mov_b32 v{O[0]+r}, 0")
    a(f"""
    s_lshr_b32 s33, s21, 5
    s_lshl_b32 s33, s33, 6
    s_add_u32 s33, s33, s27
    s_lshl_b32 s33, s33, 5
    s_and_b32 s34, s21, 31
    s_add_u32 s33, s33, s34
    s_lshl_b32 s33, s33, 10
    s_add_u32 s33, s33, {OF}
    s_mov_b32 s35, 0
    s_barrier
    """)
    stamp_mid(a, opt, 1)
    a(f"""
    ds_read_b128 {vr(K[0])}, v{VK}
    ds_read_b128 {vr(V[0][0])}, v{VV0}
    ds_read_b128 {vr(V[0][1])}, v{VV1}
    s_waitcnt vmcnt(0) lgkmcnt(0)
    v_mfma_f32_32x32x16_bf16 {vr(S[0],16)}, {vr(K[0])}, {vr(Q[0])}, 0
    s_nop 7
    s_nop 3
    """)
    stamp_mid(a, opt, 2)
    a(".p2align 3\nLa_loop:")
    N = UNR * T
    order = opt.get("order", (2, 3, 5))
    for u in range(N):
        kt, q = divmod(u, T)
        pkt, pq = divmod((u - 1) % N, T)
        nkt, nq = divmod((u + 1) % N, T)
        s = S[u % 2]; sp = S[(u - 1) % 2]; sn = S[(u + 1) % 2]
        ex = [f"v_exp_f32 v{s+i}, v{s+i}" for i in range(16)]
        pv2 = f"v_smfmac_f32_32x32x32_bf16 {vr(O[pq],16)}, {vr(V[pkt%2][1])}, {vr(sp+8,8)}, v{IDX}"
        pv1 = f"v_smfmac_f32_32x32x32_bf16 {vr(O[q],16)}, {vr(V[kt%2][0])}, {vr(s,8)}, v{IDX}"
        qk = f"v_mfma_f32_32x32x16_bf16 {vr(sn,16)}, {vr(K[nkt%2])}, {vr(Q[nq])}, 0"
        o0, o1, o2 = order
        seq = ex[:o0] + [pv2]
        extra = []
        if q == 0:
            nb = (kt + 1) % 2
            if kt == UNR - 1:
                seq += [f"s_cmp_lg_u32 s35, {FIRST//UNR-1}", "s_cbranch_scc1 La_skipw", "s_barrier", "La_skipw:"]
            extra = [f"ds_read_b128 {vr(K[nb])}, v{VK} offset:{(kt+1)*1024}",
                     f"ds_read_b128 {vr(V[nb][0])}, v{VV0} offset:{(kt+1)*VSTR}",
                     f"ds_read_b128 {vr(V[nb][1])}, v{VV1} offset:{(kt+1)*VSTR}"]
        seq += ex[o0:o0+o1]
        if q == T - 1: seq += ["s_waitcnt lgkmcnt(0)"]
        seq += [qk] + extra + ex[o0+o1:o0+o1+o2] + [pv1]
        if kt == UNR - 1 and q == T - 1:
            seq += [f"v_add_u32 v{VK}, {UNR*1024}, v{VK}", f"v_add_u32 v{VV0}, {UNR*VSTR}, v{VV0}", f"v_add_u32 v{VV1}, {UNR*VSTR}, v{VV1}",
                    f"s_add_u32 s35, s35, 1", f"s_cmp_lt_u32 s35, {64//UNR}"]
        seq += ex[o0+o1+o2:]
        for x in seq: a(x)
    a("s_cbranch_scc1 La_loop")
    stamp_mid(a, opt, 3)
    pkt, pq = divmod(N - 1, T)
    a(f"""
    s_nop 1
    v_smfmac_f32_32x32x32_bf16 {vr(O[pq],16)}, {vr(V[pkt%2][1])}, {vr(S[(N-1)%2]+8,8)}, v{IDX}
    s_mov_b32 s36, {hex(f2u(2.0**-32))}
    s_mov_b32 s37, {hex(f2u(2.0**32))}
    s_add_u32 s38, s33, 0x8000
    s_add_u32 s39, s33, 0x10000
    s_add_u32 s40, s33, 0x18000
    """)
    z = S[0]
    a(f"v_mul_f32 v{z}, 0, v{O[0]}")
    for q in range(T):
        for r in range(9):
            if q or r: a(f"v_fmac_f32 v{z}, 0, v{O[q]+r}")
    a(f"""
    v_min3_f32 v{z+1}, v{O[0]+8}, v{O[1]+8}, v{O[2]+8}
    v_max3_f32 v{z+2}, v{O[0]+8}, v{O[1]+8}, v{O[2]+8}
    v_min_f32 v{z+1}, v{z+1}, v{O[3]+8}
    v_max_f32 v{z+2}, v{z+2}, v{O[3]+8}
    v_cmp_nge_f32 s[42:43], v{z+1}, s36
    v_cmp_nle_f32 s[44:45], v{z+2}, s37
    v_cmp_neq_f32 vcc, 0, v{z}
    s_nop 1
    s_or_b64 s[42:43], s[42:43], s[44:45]
    s_or_b64 vcc, vcc, s[42:43]
    s_cbranch_vccnz La_slow
    La_fin:
    """)
    for q in range(T): a(f"v_rcp_f32 v{z+q}, v{O[q]+8}")
    for q in range(T):
        o = O[q]
        for r in range(8): a(f"v_mul_f32 v{o+r}, v{z+q}, v{o+r}")
        for r in range(4): a(f"v_cvt_pk_bf16_f32 v{o+r}, v{o+2*r}, v{o+2*r+1}")
        a(f"buffer_store_dwordx4 {vr(o)}, v{VLANE}, s[12:15], s{(33, 38, 39, 40)[q]} offen{st}")
    stamp_end(a, opt, 1, nmid=4)
    a("La_done:\ns_endpgm")
    a(f"""
    La_loader:
    s_sub_u32 s20, s20, 4
    s_and_b32 s24, s20, 1
    s_lshr_b32 s25, s20, 1
    s_lshl_b32 s26, s24, 22
    s_add_u32 s26, s26, s23
    s_add_u32 s26, s26, {KF}
    s_lshl_b32 s29, s25, 10
    s_movk_i32 s30, 1024
    s_cmp_eq_u32 s24, 0
    s_cselect_b32 s30, s30, {VSTR}
    s_cselect_b32 s31, 0, {VBASE}
    s_mul_i32 s32, s25, s30
    s_add_u32 s31, s31, s32
    s_lshl_b32 s30, s30, 1
    v_mov_b32 v8, 0x3f803f80
    v_mov_b32 v9, 0x3f803f80
    v_mov_b32 v10, 0x3f803f80
    v_mov_b32 v11, 0x3f803f80
    v_mov_b32 v12, 0
    v_mov_b32 v13, 0
    v_mov_b32 v14, 0
    v_mov_b32 v15, 0
    v_mul_u32_u24 v1, {VSTR}, v0
    v_add_u32 v1, {VBASE+1024}, v1
    s_waitcnt lgkmcnt(0)
    s_add_u32 s8, s4, s26
    s_addc_u32 s9, s5, 0
    s_mov_b32 s10, 65536
    s_mov_b32 s11, 0x20000
    s_add_u32 s20, s20, 4
    """)
    stamp_mid(a, opt, 0)
    a(f"s_movk_i32 s35, {FIRST//2}")
    a(f"""
    La_ld1:
    s_mov_b32 m0, s31
    s_add_u32 s31, s31, s30
    buffer_load_dwordx4 v{VLANE}, s[8:11], s29 offen lds
    s_add_u32 s29, s29, 2048
    s_sub_u32 s35, s35, 1
    s_cmp_lg_u32 s35, 0
    s_cbranch_scc1 La_ld1
    ds_write_b128 v1, v[8:11]
    ds_write_b128 v1, v[12:15] offset:16
    s_waitcnt vmcnt(0) lgkmcnt(0)
    s_barrier
    """)
    stamp_mid(a, opt, 1)
    a(f"""
    s_movk_i32 s35, {32-FIRST//2}
    La_ld2:
    s_mov_b32 m0, s31
    s_add_u32 s31, s31, s30
    buffer_load_dwordx4 v{VLANE}, s[8:11], s29 offen lds
    s_add_u32 s29, s29, 2048
    s_sub_u32 s35, s35, 1
    s_cmp_lg_u32 s35, 0
    s_cbranch_scc1 La_ld2
    s_waitcnt vmcnt(0)
    """)
    stamp_mid(a, opt, 2)
    a("s_barrier")
    stamp_end(a, opt, 1, nmid=3)
    a("s_endpgm")
    a("La_slow:")
    a(f"""
    v_subrev_u32 v{VK}, {64*1024}, v{VK}
    v_subrev_u32 v{VV0}, {64*VSTR}, v{VV0}
    v_subrev_u32 v{VV1}, {64*VSTR}, v{VV1}
    s_mov_b32 s41, 0
    La_slowq:
    v_mov_b32 v1, 0xff800000
    v_mov_b32 v6, v{VK}
    s_mov_b32 s35, 0
    """)
    s = S[0]
    a(f"""
    La_max:
    ds_read_b128 {vr(K[0])}, v6
    v_add_u32 v6, 1024, v6
    s_waitcnt lgkmcnt(0)
    v_mfma_f32_32x32x16_bf16 {vr(s,16)}, {vr(K[0])}, {vr(Q[0])}, 0
    s_nop 7
    s_nop 7
    """)
    for r in range(8): a(f"v_max3_f32 v1, v1, v{s+2*r}, v{s+2*r+1}")
    a(f"""
    s_add_u32 s35, s35, 1
    s_cmp_lt_u32 s35, 64
    s_cbranch_scc1 La_max
    v_mov_b32 v6, v1
    s_nop 1
    v_permlane32_swap_b32 v1, v6
    s_nop 1
    v_max_f32 v1, v1, v6
    """)
    for r in range(16): a(f"v_sub_f32 v{NEG+r}, 0, v1")
    for r in range(16): a(f"v_mov_b32 v{O[0]+r}, 0")
    a(f"""
    v_mov_b32 v6, v{VK}
    v_mov_b32 v160, v{VV0}
    v_mov_b32 v161, v{VV1}
    s_mov_b32 s35, 0
    La_acc:
    ds_read_b128 {vr(K[0])}, v6
    ds_read_b128 {vr(V[0][0])}, v160
    ds_read_b128 {vr(V[0][1])}, v161
    v_add_u32 v6, 1024, v6
    v_add_u32 v160, {VSTR}, v160
    v_add_u32 v161, {VSTR}, v161
    s_waitcnt lgkmcnt(0)
    v_mfma_f32_32x32x16_bf16 {vr(s,16)}, {vr(K[0])}, {vr(Q[0])}, {vr(NEG,16)}
    s_nop 7
    s_nop 7
    """)
    for r in range(16): a(f"v_exp_f32 v{s+r}, v{s+r}")
    a(f"""
    s_nop 2
    v_smfmac_f32_32x32x32_bf16 {vr(O[0],16)}, {vr(V[0][0])}, {vr(s,8)}, v{IDX}
    v_smfmac_f32_32x32x32_bf16 {vr(O[0],16)}, {vr(V[0][1])}, {vr(s+8,8)}, v{IDX}
    s_add_u32 s35, s35, 1
    s_cmp_lt_u32 s35, 64
    s_cbranch_scc1 La_acc
    s_nop 7
    s_nop 7
    """)
    for r in range(4):
        for q in range(3): a(f"v_swap_b32 v{Q[q]+r}, v{Q[q+1]+r}")
    for r in range(9):
        for q in range(3): a(f"v_swap_b32 v{O[q]+r}, v{O[q+1]+r}")
    a(f"""
    s_add_u32 s41, s41, 1
    s_cmp_lt_u32 s41, 4
    s_cbranch_scc1 La_slowq
    s_branch La_fin
    """)
    return name, a.text(), 168, "grid=(256,1,1) block=(512,1,1) lds=134656"

def k_oproj(opt):
    name = "mha_oproj_kernel"
    a = Asm()
    OB = 32
    ACC = [160, 176]
    WB = [8, 16, 192, 200]
    st = opt.get("st2", "")
    AHEAD = opt.get("ahead", 12)
    a(f"""
    s_cmp_ge_u32 s2, 256
    s_cbranch_scc1 Lo_done
    """)
    stamp_start(a, opt)
    a(f"""
    s_load_dwordx2 s[4:5], s[0:1], 16
    s_load_dwordx4 s[8:11], s[0:1], 40
    s_load_dwordx2 s[6:7], s[0:1], 64
    v_lshrrev_b32 v1, 6, v0
    v_and_b32 v0, 63, v0
    s_and_b32 s14, s2, 7
    v_readfirstlane_b32 s20, v1
    s_lshr_b32 s15, s2, 3
    s_lshl_b32 s21, s14, 2
    s_lshr_b32 s22, s15, 3
    s_add_u32 s21, s21, s22
    s_and_b32 s22, s15, 7
    s_lshr_b32 s23, s21, 4
    s_lshl_b32 s26, s22, 7
    s_cmp_ge_u32 s20, 4
    s_cbranch_scc1 Lo_loader
    s_lshl_b32 s24, s21, 2
    s_add_u32 s24, s24, s20
    s_lshl_b32 s25, s24, 15
    s_add_u32 s25, s25, {OF}
    v_lshlrev_b32 v2, 4, v0
    s_waitcnt lgkmcnt(0)
    s_add_u32 s16, s6, s25
    s_addc_u32 s17, s7, 0
    s_mov_b32 s18, 32768
    s_mov_b32 s19, 0x20000
    """)
    stamp_mid(a, opt, 0)
    def oload(h): return f"s_movk_i32 s29, {(h//4)*4096}\nbuffer_load_dwordx4 {vr(OB+4*h)}, v2, s[16:19], s29 offen offset:{(h%4)*1024}" if h % 4 == 0 else f"buffer_load_dwordx4 {vr(OB+4*h)}, v2, s[16:19], s29 offen offset:{(h%4)*1024}"
    for h in range(AHEAD): a(oload(h))
    a(f"""
    v_lshrrev_b32 v4, 5, v0
    v_bfe_u32 v5, v0, 2, 2
    v_lshl_add_u32 v5, v4, 2, v5
    v_lshlrev_b32 v6, 7, v5
    v_bfe_u32 v5, v0, 3, 1
    v_lshl_add_u32 v6, v5, 6, v6
    v_bfe_u32 v5, v0, 4, 1
    v_lshl_add_u32 v6, v5, 5, v6
    v_and_b32 v5, 1, v0
    v_lshl_add_u32 v6, v5, 4, v6
    v_bfe_u32 v5, v0, 1, 1
    v_lshl_add_u32 v6, v5, 3, v6
    v_xor_b32 v7, 64, v6
    v_and_b32 v5, 31, v0
    v_lshlrev_b32 v24, 11, v5
    v_lshl_add_u32 v24, v4, 4, v24
    s_and_b32 s30, s24, 63
    s_lshl_b32 s30, s30, 16
    s_lshl_b32 s31, s23, 10
    s_add_u32 s30, s30, s31
    s_add_u32 s30, s30, s26
    """)
    srd(a, 4, 10, 11, 4 << 20)
    def reads(h):
        return [f"ds_read_b64_tr_b16 {vr(WB[h%4]+ns*4+rd*2,2)}, v{6+ns} offset:{h*2048+rd*1024}" for ns in range(2) for rd in range(2)]
    a("s_barrier")
    stamp_mid(a, opt, 1)
    for r in reads(0) + reads(1): a(r)
    issued = AHEAD
    for h in range(32):
        nn = h + 2
        R = reads(nn) if nn < 32 else []
        ld = []
        if issued < 32: ld = [oload(issued)]; issued += 1
        a(f"s_waitcnt vmcnt({issued - len(ld) - h - 1}) lgkmcnt({4 if h < 31 else 0})")
        M = [f"v_mfma_f32_32x32x16_bf16 {vr(ACC[ns],16)}, {vr(WB[h%4]+ns*4)}, {vr(OB+4*h)}, {vr(ACC[ns],16) if h else 0}" for ns in range(2)]
        bar = ["s_barrier"] if (nn % 8 == 0 and nn < 32) else []
        for x in [M[0]] + bar + R[:2] + ld + [M[1]] + R[2:]: a(x)
    stamp_mid(a, opt, 2)
    a("s_nop 7\ns_nop 3")
    for ns in range(2):
        d = ACC[ns]
        for r in range(8): a(f"v_cvt_pk_bf16_f32 v{d+r}, v{d+2*r}, v{d+2*r+1}")
        a(f"buffer_store_dwordx4 {vr(d)}, v24, s[4:7], s30 offen offset:{ns*64}{st}")
        a(f"buffer_store_dwordx4 {vr(d+4)}, v24, s[4:7], s30 offen offset:{ns*64+32}{st}")
    stamp_end(a, opt, 2, nmid=3)
    a("s_endpgm")
    a(f"""
    Lo_loader:
    s_sub_u32 s24, s20, 4
    v_lshrrev_b32 v3, 3, v0
    v_lshlrev_b32 v3, 10, v3
    v_bfe_u32 v4, v0, 4, 1
    v_lshlrev_b32 v4, 2, v4
    v_and_b32 v5, 7, v0
    v_xor_b32 v4, v4, v5
    v_lshl_add_u32 v3, v4, 4, v3
    s_lshl_b32 s27, s24, 13
    s_lshl_b32 s28, s24, 10
    s_cmp_eq_u32 s23, 0
    s_waitcnt lgkmcnt(0)
    s_cselect_b32 s4, s4, s8
    s_cselect_b32 s5, s5, s9
    s_add_u32 s12, s4, s26
    s_addc_u32 s13, s5, 0
    s_sub_u32 s14, {512*1024}, s26
    s_mov_b32 s15, 0x20000
    """)
    stamp_mid(a, opt, 0)
    def piece():
        a("""
        s_mov_b32 m0, s28
        s_add_u32 s28, s28, 4096
        buffer_load_dwordx4 v3, s[12:15], s27 offen lds
        s_add_u32 s27, s27, 32768
        """)
    for i in range(8): piece()
    a("s_waitcnt vmcnt(4)\ns_barrier")
    stamp_mid(a, opt, 1)
    for i in range(4): piece()
    a("s_waitcnt vmcnt(4)\ns_barrier")
    for i in range(4): piece()
    a("s_waitcnt vmcnt(4)\ns_barrier\ns_waitcnt vmcnt(0)\ns_barrier")
    stamp_end(a, opt, 2, nmid=2)
    a("Lo_done:\ns_endpgm")
    return name, a.text(), 208, "grid=(256,1,1) block=(512,1,1) lds=65536"

def build(opt=None):
    opt = opt or {}
    ref = open("cdna_kernels/" + NAME + ".s.ref").read().split("\n")
    head = []
    for line in ref:
        if line.startswith("; Override"): break
        head.append(line)
    ks = [k_qkv(opt), k_attn(opt), k_oproj(opt)]
    sel = opt.get("only")
    ks.append(("mha_nop_kernel", "  s_endpgm\n", 8, "grid=(1,1,1) block=(64,1,1) lds=0"))
    txt = "\n".join(head) + "\n"
    sel = sel or [0, 1, 2]
    for i in sel: txt += f"; @launch kernel={ks[i][0]} {ks[i][3]}\n"
    ks = [k for i, k in enumerate(ks) if i in sel]
    txt += '.amdgcn_target "amdgcn-amd-amdhsa--gfx950"\n.text\n'
    for n, body, nv, _ in ks:
        txt += header(n) + body + descriptor(n, nv)
    return txt

if __name__ == "__main__":
    out = sys.argv[1] if len(sys.argv) > 1 else "cdna_kernels/" + NAME + ".s"
    opt = eval(sys.argv[2]) if len(sys.argv) > 2 else {}
    open(out, "w").write(build(opt))
```
